```python
import torch

def _softmax(x, axis=-1):
    return torch.softmax(x, dim=axis)
def _gelu(x):
    return torch.nn.functional.gelu(x, approximate="tanh")
def _silu(x):
    return torch.nn.functional.silu(x)
def _sigmoid(x):
    return torch.sigmoid(x)
def _layernorm(x, axis=-1, eps=1e-5):
    m = x.mean(dim=axis, keepdim=True)
    v = x.var(dim=axis, keepdim=True, unbiased=False)
    return (x - m) / torch.sqrt(v + eps)
def _scatter_add(tgt, idx, src, axis=0):
    return tgt.clone().index_add_(axis, idx, src)
def _segment_sum(src, seg, n):
    out = torch.zeros((n,) + src.shape[1:], dtype=src.dtype)
    return out.index_add_(0, seg, src)
def _pad(x, pw):
    flat = tuple(v for pair in reversed(pw) for v in pair)
    return torch.nn.functional.pad(x, flat)

kernel_name = 'standalone__linear_kernel_rfa__decode'

def setup_inputs():

    _w = (lambda a: (lambda t: t.to(torch.bfloat16) if t.is_floating_point() else t)(torch.as_tensor(a)))
    B, H, Sq, Sk, D, M = 2, 32, 1, 8192, 128, 8
    return {
        "q": _w((lambda *s: torch.randn(*s, dtype=torch.bfloat16) * 0.4)(B, H, Sq, D)),
        "k": _w((lambda *s: torch.randn(*s, dtype=torch.bfloat16) * 1.6)(B, H, Sk, D)),
        "v": _w((lambda *s: torch.randn(*s, dtype=torch.bfloat16) * 1.6)(B, H, Sk, D)),
        "omega": _w((lambda *s: torch.randn(*s, dtype=torch.bfloat16) * 1.6)(M, D)),
    }

def reference(q, k, v, omega):
    d = q.shape[-1]
    m = omega.shape[0]
    scale = float(d) ** -0.25
    qs = q * scale
    ks = k * scale
    q_proj = torch.einsum("bhsd,md->bhsm", qs, omega)
    k_proj = torch.einsum("bhsd,md->bhsm", ks, omega)
    q_sq = 0.5 * torch.einsum("bhsd,bhsd->bhs", qs, qs)[..., None]
    k_sq = 0.5 * torch.einsum("bhsd,bhsd->bhs", ks, ks)[..., None]
    inv_sqrt_m = float(m) ** -0.5
    phi_q = torch.exp(q_proj - q_sq) * inv_sqrt_m + 1e-6
    phi_k = torch.exp(k_proj - k_sq) * inv_sqrt_m + 1e-6
    kv = torch.einsum("bhsm,bhsd->bhmd", phi_k, v)
    z  = torch.einsum("bhsm->bhm", phi_k)
    num = torch.einsum("bhqm,bhmd->bhqd", phi_q, kv)
    den = torch.einsum("bhqm,bhm->bhq", phi_q, z)[..., None] + 1e-6
    return num / den
```

```python
import sys

NAME = "standalone__linear_kernel_rfa__decode_kernel"
HDR = """; Kernarg layout for this problem (56 bytes, ptrs only, base s[0:1]):
"""

vLANE, vK, vV, vTMP = 0, 1, 2, 3
D, G0, G1, C, PA = 4, 8, 12, 16, 20
XP, SEL, ONES = 24, 26, 28
T = 32
VT = 40
ACCZ, PQ, ACC = 56, 60, 64
OM0, OM1 = 96, 112
KB = [128, 192]
VB = [160, 224]
sWG, sWAVE = 2, 3
sKSRD, sVSRD, sWSRD, sXSRD = 8, 12, 16, 20
sSCALE, sLOG2E, sISM, sEPS = 24, 26, 28, 30
sHI, sPLO, sPHI, s4096 = 32, 33, 34, 35
sMD = 36
sMLO = 44
sCNT = 46
sQ, sKP, sVP, sOM, sOUT, sDBG, sWS = 48, 50, 52, 54, 56, 58, 60
sTMP = 62

def vr(a, n): return f"v[{a}:{a+n-1}]"
def sr(a, n): return f"s[{a}:{a+n-1}]"

def gen(handoff="atomic", stamps=False, lds=81920 + 512, flags="nt", flagsV=None):
    if flagsV is None: flagsV = flags
    L = []
    def A(s):
        for x in s.split("\n"): L.append(x)
    NWG = 256; CHUNK = 524288; NT = 16
    A(HDR + f"; @launch grid=({NWG},1,1) block=(256,1,1) lds={lds}")
    A('.amdgcn_target "amdgcn-amd-amdhsa--gfx950"\n.text')
    A(f".globl {NAME}\n.p2align 8\n.type {NAME},@function\n{NAME}:")
    A(f"  s_cmp_ge_u32 s{sWG}, {NWG}\n  s_cbranch_scc1 L_done")
    if stamps: A("  s_memrealtime s[80:81]")
    A(f"  s_load_dwordx8 {sr(sQ,8)}, s[0:1], 0")
    A(f"  s_load_dwordx4 {sr(sOUT,4)}, s[0:1], 32")
    A(f"  s_load_dwordx2 {sr(sWS,2)}, s[0:1], 48")
    A(f"  v_lshrrev_b32 v{vTMP}, 6, v0")
    A(f"  v_and_b32 v{vLANE}, 63, v0")
    A(f"  v_readfirstlane_b32 s{sWAVE}, v{vTMP}")
    A(f"  v_and_b32 v{T}, 3, v{vLANE}")
    A(f"  v_lshlrev_b32 v{T}, 10, v{T}")
    A(f"  v_bfe_u32 v{T+1}, v{vLANE}, 2, 2")
    A(f"  v_lshl_add_u32 v{T}, v{T+1}, 8, v{T}")
    A(f"  v_lshrrev_b32 v{T+2}, 4, v{vLANE}")
    A(f"  v_lshl_add_u32 v{vK}, v{T+2}, 4, v{T}")
    A(f"  v_lshlrev_b32 v{vV}, 4, v{vLANE}")
    A(f"  s_lshl_b32 s{sTMP}, s{sWAVE}, 13")
    A(f"  v_add_u32 v{vK}, s{sTMP}, v{vK}")
    A(f"  v_add_u32 v{vV}, s{sTMP}, v{vV}")
    A(f"  s_movk_i32 s{s4096}, 0x1000")
    A(f"  s_lshl_b32 s{sTMP}, s{sWG}, 19")
    A(f"  s_lshr_b32 s{sTMP+1}, s{sWG}, 13")
    A(f"  s_mov_b32 s{sKSRD+2}, {CHUNK}\n  s_mov_b32 s{sKSRD+3}, 0x20000")
    A(f"  s_mov_b32 s{sVSRD+2}, {CHUNK}\n  s_mov_b32 s{sVSRD+3}, 0x20000")
    A("  s_waitcnt lgkmcnt(0)")
    A(f"  s_add_u32 s{sKSRD}, s{sKP}, s{sTMP}\n  s_addc_u32 s{sKSRD+1}, s{sKP+1}, s{sTMP+1}")
    A(f"  s_add_u32 s{sVSRD}, s{sVP}, s{sTMP}\n  s_addc_u32 s{sVSRD+1}, s{sVP+1}, s{sTMP+1}")

    def loadK(b):
        for t in range(2):
            for j in range(4):
                so = f"s{s4096}" if t else "0"
                A(f"  buffer_load_dwordx4 {vr(KB[b]+t*16+j*4,4)}, v{vK}, {sr(sKSRD,4)}, {so} offen offset:{j*64} {flags}")
        A(f"  v_add_u32 v{vK}, 0x8000, v{vK}")
    def loadV(b):
        for i in range(8):
            so = f"s{s4096}" if i >= 4 else "0"
            A(f"  buffer_load_dwordx4 {vr(VB[b]+i*4,4)}, v{vV}, {sr(sVSRD,4)}, {so} offen offset:{(i&3)*1024} {flagsV}")
        A(f"  v_add_u32 v{vV}, 0x8000, v{vV}")

    loadK(0)
    A(f"  s_mov_b32 s{sXSRD}, s{sOM}\n  s_mov_b32 s{sXSRD+1}, s{sOM+1}\n  s_movk_i32 s{sXSRD+2}, 0x800\n  s_mov_b32 s{sXSRD+3}, 0x20000")
    A(f"  v_and_b32 v{T}, 7, v{vLANE}")
    A(f"  v_lshlrev_b32 v{T+3}, 4, v{T+2}")
    A(f"  v_lshl_add_u32 v{T}, v{T}, 8, v{T+3}")
    for j in range(4):
        A(f"  buffer_load_dwordx4 {vr(OM1+j*4,4)}, v{T}, {sr(sXSRD,4)}, 0 offen offset:{j*64}")
    A(f"  s_mov_b32 s{sWSRD}, s{sQ}\n  s_mov_b32 s{sWSRD+1}, s{sQ+1}\n  s_movk_i32 s{sWSRD+2}, 0x4000\n  s_mov_b32 s{sWSRD+3}, 0x20000")
    A(f"  s_lshr_b32 s{sTMP}, s{sWG}, 2\n  s_lshl_b32 s{sTMP}, s{sTMP}, 8")
    A(f"  v_add_u32 v{T+3}, s{sTMP}, v{T+3}")
    for j in range(4):
        A(f"  buffer_load_dwordx4 {vr(VT+j*4,4)}, v{T+3}, {sr(sWSRD,4)}, 0 offen offset:{j*64}")
    loadV(0); loadK(1); loadV(1)
    for p, val in ((sSCALE, 0x3e9837f0), (sLOG2E, 0x3fb8aa3c), (sISM, 0x3eb504f3), (sEPS, 0x358637bd)):
        A(f"  s_mov_b32 s{p}, {hex(val)}\n  s_mov_b32 s{p+1}, {hex(val)}")
    A(f"  s_mov_b32 s{sHI}, 0xffff0000\n  s_mov_b32 s{sPLO}, 0x05040100\n  s_mov_b32 s{sPHI}, 0x07060302")
    for r in range(4):
        m = sum(1 << (20 * g + r) for g in range(4))
        A(f"  s_mov_b32 s{sMD+2*r}, {hex(m & 0xffffffff)}\n  s_mov_b32 s{sMD+2*r+1}, {hex(m >> 32)}")
    A(f"  s_mov_b32 s{sMLO}, 0x00ff00ff\n  s_mov_b32 s{sMLO+1}, 0x00ff00ff")
    A(f"  v_mov_b32 v{XP+1}, 0\n  v_mov_b32 v{SEL+1}, 0")
    A(f"  v_mov_b32 v{T}, 0xbf00\n  v_mov_b32 v{T+1}, 0xbf000000")
    A(f"  v_cndmask_b32 v{SEL}, v{T+1}, v{T}, {sr(sMLO,2)}")
    for r in range(4): A(f"  v_mov_b32 v{ONES+r}, 0x3f803f80")
    for r in range(4): A(f"  v_mov_b32 v{ACCZ+r}, 0")
    for r in range(32): A(f"  v_mov_b32 v{ACC+r}, 0")

    def scale_unpack(a):
        for i in range(4):
            A(f"  v_lshlrev_b32 v{T+2*i}, 16, v{a+i}\n  v_and_b32 v{T+2*i+1}, s{sHI}, v{a+i}")
    def scale_rest(a):
        for i in range(4): A(f"  v_pk_mul_f32 {vr(T+2*i,2)}, {vr(T+2*i,2)}, {sr(sSCALE,2)}")
        for i in range(4): A(f"  v_cvt_pk_bf16_f32 v{a+i}, v{T+2*i}, v{T+2*i+1}")
    def unpack4(dst, p0, p1):
        A(f"  v_lshlrev_b32 v{dst}, 16, v{p0}\n  v_and_b32 v{dst+1}, s{sHI}, v{p0}")
        A(f"  v_lshlrev_b32 v{dst+2}, 16, v{p1}\n  v_and_b32 v{dst+3}, s{sHI}, v{p1}")
    def pack4(src, p0, p1):
        A(f"  v_cvt_pk_bf16_f32 v{p0}, v{src}, v{src+1}\n  v_cvt_pk_bf16_f32 v{p1}, v{src+2}, v{src+3}")
    def phi_tail():
        pack4(C, T, T+1); unpack4(C, T, T+1)
        A(f"  v_pk_mul_f32 {vr(C,2)}, {vr(C,2)}, {sr(sLOG2E,2)}\n  v_pk_mul_f32 {vr(C+2,2)}, {vr(C+2,2)}, {sr(sLOG2E,2)}")
        for r in range(4): A(f"  v_exp_f32 v{C+r}, v{C+r}")
        A("  s_nop 0")
        pack4(C, T, T+1); unpack4(C, T, T+1)
        A(f"  v_pk_mul_f32 {vr(C,2)}, {vr(C,2)}, {sr(sISM,2)}\n  v_pk_mul_f32 {vr(C+2,2)}, {vr(C+2,2)}, {sr(sISM,2)}")
        pack4(C, T, T+1); unpack4(C, T, T+1)
        A(f"  v_pk_add_f32 {vr(C,2)}, {vr(C,2)}, {sr(sEPS,2)}\n  v_pk_add_f32 {vr(C+2,2)}, {vr(C+2,2)}, {sr(sEPS,2)}")
        pack4(C, T, T+1)

    A("  s_waitcnt vmcnt(24)")
    for j in range(4):
        scale_unpack(VT+j*4); scale_rest(VT+j*4)
    A("  s_nop 1")
    for j in range(4):
        c0 = "0" if j == 0 else vr(D,4); c1 = "0" if j == 0 else vr(G0,4)
        A(f"  v_mfma_f32_16x16x32_bf16 {vr(D,4)}, {vr(OM1+j*4,4)}, {vr(VT+j*4,4)}, {c0}")
        A(f"  v_mfma_f32_16x16x32_bf16 {vr(G0,4)}, {vr(VT+j*4,4)}, {vr(VT+j*4,4)}, {c1}")
    for r in range(16): A(f"  v_cndmask_b32 v{OM0+r}, 0, v{OM1+r}, {sr(sMLO,2)}")
    for r in range(16): A(f"  v_cndmask_b32 v{OM1+r}, v{OM1+r}, 0, {sr(sMLO,2)}")
    pack4(D, T, T+1); unpack4(C, T, T+1)
    A(f"  v_cvt_pk_bf16_f32 v{T+2}, v{G0}, v{G0}")
    A(f"  v_and_b32 v{T+2}, s{sHI}, v{T+2}")
    for r in range(4): A(f"  v_fma_f32 v{C+r}, v{T+2}, -0.5, v{C+r}")
    phi_tail(); unpack4(PQ, T, T+1)

    A(f"  s_mov_b32 s{sCNT}, {NT//2}")
    A("  .p2align 3\nL_loop:")
    A(f"  s_sub_u32 s{sCNT}, s{sCNT}, 1")
    for b in range(2):
        if b == 0:
            A("  s_waitcnt vmcnt(24)")
        pend = None
        def mf(gi):
            t, j = gi >> 2, gi & 3
            a = KB[b] + gi * 4
            om = (OM1 if t else OM0) + j * 4
            g = G1 if t else G0
            A(f"  v_mfma_f32_16x16x32_bf16 {vr(D,4)}, {vr(a,4)}, {vr(om,4)}, {'0' if gi == 0 else vr(D,4)}")
            A(f"  v_mfma_f32_16x16x32_bf16 {vr(g,4)}, {vr(a,4)}, {vr(a,4)}, {'0' if j == 0 else vr(g,4)}")
        for gi in range(8):
            scale_unpack(KB[b] + gi * 4)
            if gi: mf(gi - 1)
            scale_rest(KB[b] + gi * 4)
        A("  s_nop 1")
        mf(7)
        A(f"  s_cmp_eq_u32 s{sCNT}, 0\n  s_cbranch_scc1 L_nk{b}")
        loadK(b)
        A(f"L_nk{b}:\n  s_nop 7")
        for r in range(4): A(f"  v_cvt_pk_bf16_f32 v{G0+r}, v{G0+r}, v{G1+r}")
        pack4(D, T, T+1)
        A(f"  v_cndmask_b32 v{XP}, 0, v{G0}, {sr(sMD,2)}")
        for r in range(1, 4): A(f"  v_cndmask_b32 v{XP}, v{XP}, v{G0+r}, {sr(sMD+2*r,2)}")
        unpack4(C, T, T+1)
        A("  s_nop 1")
        A(f"  v_mfma_f32_16x16x16_bf16 {vr(C,4)}, {vr(XP,2)}, {vr(SEL,2)}, {vr(C,4)}")
        A("  s_nop 7")
        phi_tail()
        A(f"  v_cndmask_b32 v{PA}, 0, v{T}, {sr(sMLO,2)}\n  v_cndmask_b32 v{PA+1}, 0, v{T+1}, {sr(sMLO,2)}")
        A(f"  v_cndmask_b32 v{PA+2}, v{T}, 0, {sr(sMLO,2)}\n  v_cndmask_b32 v{PA+3}, v{T+1}, 0, {sr(sMLO,2)}")
        A(f"  s_cbranch_scc1 L_lv{b}\n  s_waitcnt vmcnt(24)\n  s_branch L_gv{b}\nL_lv{b}:\n  s_waitcnt vmcnt({16 if b == 0 else 0})\nL_gv{b}:")
        def perms(q):
            bank = VT + (q & 1) * 8
            for h in range(2):
                for p in range(4):
                    A(f"  v_perm_b32 v{bank+h*4+p}, v{VB[b]+(2*p+1)*4+q}, v{VB[b]+(2*p)*4+q}, s{sPHI if h else sPLO}")
        def pv(q):
            bank = VT + (q & 1) * 8
            for h in range(2):
                e = 2 * q + h
                A(f"  v_mfma_f32_16x16x32_bf16 {vr(ACC+e*4,4)}, {vr(PA,4)}, {vr(bank+h*4,4)}, {vr(ACC+e*4,4)}")
        perms(0)
        A(f"  v_mfma_f32_16x16x32_bf16 {vr(ACCZ,4)}, {vr(PA,4)}, {vr(ONES,4)}, {vr(ACCZ,4)}")
        perms(1); pv(0); perms(2); pv(1); perms(3); pv(2)
        A(f"  s_cbranch_scc1 L_nv{b}")
        loadV(b)
        if b == 0:
            A(f"  s_waitcnt vmcnt(24)\n  s_branch L_gk1\nL_nv0:\n  s_waitcnt vmcnt(8)\nL_gk1:")
            pv(3)
        else:
            pv(3)
            A("  s_branch L_loop\nL_nv1:")
            A("  s_nop 0")
            pv(3)

    if stamps: A("  s_memrealtime s[82:83]")
    A(f"  v_lshlrev_b32 v{vTMP}, 4, v{vLANE}")
    A(f"  s_lshl_b32 s{sTMP}, s{sWAVE}, 12")
    A(f"  v_add_u32 v{vK}, s{sTMP}, v{vTMP}")
    A(f"  s_lshl_b32 s{sTMP}, s{sWAVE}, 10")
    A(f"  v_add_u32 v{vV}, s{sTMP}, v{vTMP}")
    for r in range(4): A(f"  v_mov_b32 v{T+r}, v{ACCZ+r}")
    A("  s_nop 1")
    for r in range(4): A(f"  v_permlane32_swap_b32 v{ACCZ+r}, v{T+r}")
    for r in range(4): A(f"  v_add_f32 v{ACCZ+r}, v{ACCZ+r}, v{T+r}")
    A(f"  ds_write_b128 v{vV}, {vr(ACCZ,4)} offset:16384")
    for p in range(4):
        for r in range(4): A(f"  v_permlane32_swap_b32 v{ACC+p*4+r}, v{ACC+(p+4)*4+r}")
        for r in range(0, 4, 2): A(f"  v_pk_add_f32 {vr(ACC+p*4+r,2)}, {vr(ACC+p*4+r,2)}, {vr(ACC+(p+4)*4+r,2)}")
        A(f"  ds_write_b128 v{vK}, {vr(ACC+p*4,4)} offset:{p*1024}")
    A(f"  s_lshr_b32 s{sTMP}, s{sWG}, 2")
    A(f"  s_lshl_b32 s{sTMP+1}, s{sTMP}, 15")
    A(f"  s_add_u32 s{sWSRD}, s{sWS}, s{sTMP+1}\n  s_addc_u32 s{sWSRD+1}, s{sWS+1}, 0")
    A(f"  s_mov_b32 s{sWSRD+2}, 0x8000\n  s_mov_b32 s{sWSRD+3}, 0x20000")
    A(f"  s_and_b32 s{sTMP+2}, s{sWG}, 3\n  s_lshl_b32 s{sTMP+2}, s{sTMP+2}, 13")
    A("  s_waitcnt lgkmcnt(0)\n  s_barrier")
    R = KB[0]
    for w in range(4): A(f"  ds_read_b128 {vr(R+w*4,4)}, v{vV} offset:{w*4096}")
    for w in range(4): A(f"  ds_read_b128 {vr(R+16+w*4,4)}, v{vTMP} offset:{16384+w*1024}")
    def sum4(base):
        for r in range(0, 4, 2):
            A(f"  v_pk_add_f32 {vr(base+r,2)}, {vr(base+r,2)}, {vr(base+4+r,2)}")
        for r in range(0, 4, 2):
            A(f"  v_pk_add_f32 {vr(base+8+r,2)}, {vr(base+8+r,2)}, {vr(base+12+r,2)}")
        for r in range(0, 4, 2):
            A(f"  v_pk_add_f32 {vr(base+r,2)}, {vr(base+r,2)}, {vr(base+8+r,2)}")
    A("  s_waitcnt lgkmcnt(4)")
    sum4(R)
    A(f"  buffer_store_dwordx4 {vr(R,4)}, v{vV}, {sr(sWSRD,4)}, s{sTMP+2} offen sc0 sc1")
    A("  s_waitcnt lgkmcnt(0)")
    sum4(R + 16)
    A(f"  v_and_b32 v{T}, 16, v{vLANE}\n  v_lshlrev_b32 v{T}, 4, v{T}")
    A(f"  s_lshl_b32 s{sTMP+3}, s{sWAVE}, 10\n  s_add_u32 s{sTMP+3}, s{sTMP+3}, 0x1000")
    A(f"  v_add_u32 v{T}, s{sTMP+3}, v{T}")
    A("  s_mov_b64 exec, 0x10001")
    A(f"  buffer_store_dwordx4 {vr(R+16,4)}, v{T}, {sr(sWSRD,4)}, s{sTMP+2} offen sc0 sc1")
    A("  s_mov_b64 exec, -1")
    A(f"  s_mov_b32 s{sXSRD}, s{sDBG}\n  s_mov_b32 s{sXSRD+1}, s{sDBG+1}\n  s_movk_i32 s{sXSRD+2}, 0x100\n  s_mov_b32 s{sXSRD+3}, 0x20000")
    A(f"  s_lshl_b32 s{sTMP+4}, s{sTMP}, 2")
    A("  s_waitcnt vmcnt(0)\n  s_barrier")
    A(f"  s_cmp_lg_u32 s{sWAVE}, 0\n  s_cbranch_scc1 L_wait")
    A(f"  v_mov_b32 v{T+1}, 1\n  v_mov_b32 v{T+2}, 0\n  s_mov_b64 exec, 1")
    A(f"  buffer_atomic_add v{T+1}, off, {sr(sXSRD,4)}, s{sTMP+4} sc0 sc1")
    A("  s_waitcnt vmcnt(0)")
    A(f"  ds_write_b32 v{T+2}, v{T+1} offset:20480")
    A("  s_mov_b64 exec, -1\n  s_waitcnt lgkmcnt(0)")
    A("L_wait:\n  s_barrier")
    A(f"  v_mov_b32 v{T+2}, 0")
    A(f"  ds_read_b32 v{T+1}, v{T+2} offset:20480")
    A("  s_waitcnt lgkmcnt(0)")
    A(f"  v_readfirstlane_b32 s{sTMP+5}, v{T+1}")
    A("  s_nop 3")
    A(f"  s_cmp_lg_u32 s{sTMP+5}, 3\n  s_cbranch_scc1 L_fin")
    for w in range(4):
        A(f"  s_mov_b32 s{sTMP+6}, {w*8192}")
        A(f"  buffer_load_dwordx4 {vr(R+w*4,4)}, v{vV}, {sr(sWSRD,4)}, s{sTMP+6} offen sc0 sc1")
        A(f"  buffer_load_dwordx4 {vr(R+16+w*4,4)}, v{T}, {sr(sWSRD,4)}, s{sTMP+6} offen sc0 sc1")
    A(f"  s_mov_b32 s{sXSRD}, s{sOUT}\n  s_mov_b32 s{sXSRD+1}, s{sOUT+1}\n  s_movk_i32 s{sXSRD+2}, 0x4000\n  s_mov_b32 s{sXSRD+3}, 0x20000")
    A(f"  v_and_b32 v{T+4}, 15, v{vLANE}\n  v_lshlrev_b32 v{T+4}, 4, v{T+4}")
    A(f"  v_lshrrev_b32 v{T+5}, 5, v{vLANE}")
    A(f"  v_lshl_add_u32 v{T+4}, v{T+5}, 3, v{T+4}")
    A(f"  s_lshl_b32 s{sTMP+6}, s{sTMP}, 8\n  s_lshl_b32 s{sTMP+7}, s{sWAVE}, 1\n  s_add_u32 s{sTMP+6}, s{sTMP+6}, s{sTMP+7}")
    A(f"  v_add_u32 v{T+4}, s{sTMP+6}, v{T+4}")
    A("  s_waitcnt vmcnt(0)")
    sum4(R); sum4(R + 16)
    pack4(R, T, T+1); pack4(R+16, T+2, T+3)
    unpack4(R, T, T+1); unpack4(R+16, T+2, T+3)
    A(f"  v_mul_f32 v{R}, v{R}, v{PQ}\n  v_mul_f32 v{R+16}, v{R+16}, v{PQ}")
    for r in range(1, 4):
        A(f"  v_fmac_f32 v{R}, v{R+r}, v{PQ+r}\n  v_fmac_f32 v{R+16}, v{R+16+r}, v{PQ+r}")
    A(f"  v_mov_b32 v{R+1}, v{R}\n  v_mov_b32 v{R+17}, v{R+16}\n  s_nop 1")
    A(f"  v_permlane16_swap_b32 v{R}, v{R+1}\n  v_permlane16_swap_b32 v{R+16}, v{R+17}")
    A(f"  v_add_f32 v{R}, v{R}, v{R+1}\n  v_add_f32 v{R+16}, v{R+16}, v{R+17}")
    A(f"  v_cvt_pk_bf16_f32 v{T}, v{R}, v{R+16}")
    A(f"  v_lshlrev_b32 v{R}, 16, v{T}\n  v_and_b32 v{R+1}, s{sHI}, v{T}")
    A(f"  v_add_f32 v{R+1}, s{sEPS}, v{R+1}")
    A(f"  v_cvt_pk_bf16_f32 v{T}, v{R+1}, v{R+1}")
    A(f"  v_and_b32 v{R+1}, s{sHI}, v{T}")
    n, d = R, R+1; a, b_, c, e, f = R+2, R+3, R+4, R+5, R+6
    A(f"""  v_div_scale_f32 v{a}, {sr(sTMP+6,2)}, v{d}, v{d}, v{n}
  v_div_scale_f32 v{b_}, vcc, v{n}, v{d}, v{n}
  v_rcp_f32 v{c}, v{a}
  s_nop 0
  v_fma_f32 v{e}, -v{a}, v{c}, 1.0
  v_fmac_f32 v{c}, v{e}, v{c}
  v_mul_f32 v{e}, v{b_}, v{c}
  v_fma_f32 v{f}, -v{a}, v{e}, v{b_}
  v_fmac_f32 v{e}, v{f}, v{c}
  v_fma_f32 v{a}, -v{a}, v{e}, v{b_}
  v_div_fmas_f32 v{a}, v{a}, v{c}, v{e}
  v_div_fixup_f32 v{a}, v{a}, v{d}, v{n}
  v_cvt_pk_bf16_f32 v{a}, v{a}, v{a}""")
    A("  s_mov_b32 exec_lo, 0xffff\n  s_mov_b32 exec_hi, 0xffff")
    A(f"  buffer_store_short v{a}, v{T+4}, {sr(sXSRD,4)}, 0 offen")
    A("L_fin:")
    if stamps:
        A("  s_mov_b64 exec, 1\n  s_waitcnt vmcnt(0)\n  s_memrealtime s[84:85]\n  s_getreg_b32 s86, hwreg(HW_REG_XCC_ID)\n  s_waitcnt lgkmcnt(0)")
        A(f"  s_lshl_b32 s87, s{sWG}, 2\n  s_add_u32 s87, s87, s{sWAVE}\n  s_lshl_b32 s87, s87, 4\n  s_add_u32 s87, s87, 0x1000000")
        A(f"  v_mov_b32 v4, s80\n  v_mov_b32 v5, s86\n  v_mov_b32 v6, s84\n  v_mov_b32 v7, s82\n  v_mov_b32 v1, s87")
        A(f"  global_store_dwordx4 v1, v[4:7], {sr(sWS,2)}")
    A("L_done:\n  s_endpgm")
    A(f""".section .rodata,"a"
.p2align 6
.amdhsa_kernel {NAME}
  .amdhsa_next_free_vgpr 256
  .amdhsa_next_free_sgpr 96
  .amdhsa_accum_offset 256
  .amdhsa_group_segment_fixed_size 0
  .amdhsa_kernarg_size 56
  .amdhsa_user_sgpr_count 2
  .amdhsa_user_sgpr_kernarg_segment_ptr 1
  .amdhsa_system_sgpr_workgroup_id_x 1
  .amdhsa_float_denorm_mode_32 3
.end_amdhsa_kernel""")
    return "\n".join(L) + "\n"

if __name__ == "__main__":
    kw = eval("dict(" + (sys.argv[2] if len(sys.argv) > 2 else "") + ")")
    open(sys.argv[1], "w").write(gen(**kw))
```

```python
import sys

NAME = "standalone__linear_kernel_rfa__decode_kernel"
HDR = """; Kernarg layout for this problem (56 bytes, ptrs only, base s[0:1]):
"""

vLANE, vK, vV, vTMP = 0, 1, 2, 3
D, G0, G1, C, PA = 4, 8, 12, 16, 20
XP, SEL, ONES = 24, 26, 28
T = 32
VT = 40
ACCZ, PQ, ACC = 56, 60, 64
OM0, OM1 = 96, 112
KB = [128, 192]
VB = [160, 224]
sWG, sWAVE = 2, 3
sKSRD, sVSRD, sWSRD, sXSRD = 8, 12, 16, 20
sSCALE, sLOG2E, sISM, sEPS = 24, 26, 28, 30
sHI, sPLO, sPHI, s4096 = 32, 33, 34, 35
sMD = 36
sMLO = 44
sCNT = 46
sQ, sKP, sVP, sOM, sOUT, sDBG, sWS = 48, 50, 52, 54, 56, 58, 60
sTMP = 62

def vr(a, n): return f"v[{a}:{a+n-1}]"
def sr(a, n): return f"s[{a}:{a+n-1}]"

def gen(handoff="atomic", stamps=False, lds=81920 + 512, flags="nt", flagsV=None, dbgstamp=False):
    if dbgstamp: stamps = True
    if flagsV is None: flagsV = flags
    L = []
    def A(s):
        for x in s.split("\n"): L.append(x)
    NWG = 256; CHUNK = 524288; NT = 16
    A(HDR + f"; @launch grid=({NWG},1,1) block=(256,1,1) lds={lds}")
    A('.amdgcn_target "amdgcn-amd-amdhsa--gfx950"\n.text')
    A(f".globl {NAME}\n.p2align 8\n.type {NAME},@function\n{NAME}:")
    A(f"  s_cmp_ge_u32 s{sWG}, {NWG}\n  s_cbranch_scc1 L_done")
    if stamps: A("  s_memrealtime s[80:81]")
    A(f"  s_load_dwordx8 {sr(sQ,8)}, s[0:1], 0")
    A(f"  s_load_dwordx4 {sr(sOUT,4)}, s[0:1], 32")
    A(f"  s_load_dwordx2 {sr(sWS,2)}, s[0:1], 48")
    A(f"  v_lshrrev_b32 v{vTMP}, 6, v0")
    A(f"  v_and_b32 v{vLANE}, 63, v0")
    A(f"  v_readfirstlane_b32 s{sWAVE}, v{vTMP}")
    A(f"  v_and_b32 v{T}, 3, v{vLANE}")
    A(f"  v_lshlrev_b32 v{T}, 10, v{T}")
    A(f"  v_bfe_u32 v{T+1}, v{vLANE}, 2, 2")
    A(f"  v_lshl_add_u32 v{T}, v{T+1}, 8, v{T}")
    A(f"  v_lshrrev_b32 v{T+2}, 4, v{vLANE}")
    A(f"  v_lshl_add_u32 v{vK}, v{T+2}, 4, v{T}")
    A(f"  v_lshlrev_b32 v{vV}, 4, v{vLANE}")
    A(f"  s_lshl_b32 s{sTMP}, s{sWAVE}, 13")
    A(f"  v_add_u32 v{vK}, s{sTMP}, v{vK}")
    A(f"  v_add_u32 v{vV}, s{sTMP}, v{vV}")
    A(f"  s_movk_i32 s{s4096}, 0x1000")
    A(f"  s_lshl_b32 s{sTMP}, s{sWG}, 19")
    A(f"  s_lshr_b32 s{sTMP+1}, s{sWG}, 13")
    A(f"  s_mov_b32 s{sKSRD+2}, {CHUNK}\n  s_mov_b32 s{sKSRD+3}, 0x20000")
    A(f"  s_mov_b32 s{sVSRD+2}, {CHUNK}\n  s_mov_b32 s{sVSRD+3}, 0x20000")
    A("  s_waitcnt lgkmcnt(0)")
    A(f"  s_add_u32 s{sKSRD}, s{sKP}, s{sTMP}\n  s_addc_u32 s{sKSRD+1}, s{sKP+1}, s{sTMP+1}")
    A(f"  s_add_u32 s{sVSRD}, s{sVP}, s{sTMP}\n  s_addc_u32 s{sVSRD+1}, s{sVP+1}, s{sTMP+1}")

    def loadK(b):
        for t in range(2):
            for j in range(4):
                so = f"s{s4096}" if t else "0"
                A(f"  buffer_load_dwordx4 {vr(KB[b]+t*16+j*4,4)}, v{vK}, {sr(sKSRD,4)}, {so} offen offset:{j*64} {flags}")
        A(f"  v_add_u32 v{vK}, 0x8000, v{vK}")
    def loadV(b):
        for i in range(8):
            so = f"s{s4096}" if i >= 4 else "0"
            A(f"  buffer_load_dwordx4 {vr(VB[b]+i*4,4)}, v{vV}, {sr(sVSRD,4)}, {so} offen offset:{(i&3)*1024} {flagsV}")
        A(f"  v_add_u32 v{vV}, 0x8000, v{vV}")

    loadK(0)
    A(f"  s_mov_b32 s{sXSRD}, s{sOM}\n  s_mov_b32 s{sXSRD+1}, s{sOM+1}\n  s_movk_i32 s{sXSRD+2}, 0x800\n  s_mov_b32 s{sXSRD+3}, 0x20000")
    A(f"  v_and_b32 v{T}, 7, v{vLANE}")
    A(f"  v_lshlrev_b32 v{T+3}, 4, v{T+2}")
    A(f"  v_lshl_add_u32 v{T}, v{T}, 8, v{T+3}")
    for j in range(4):
        A(f"  buffer_load_dwordx4 {vr(OM1+j*4,4)}, v{T}, {sr(sXSRD,4)}, 0 offen offset:{j*64}")
    A(f"  s_mov_b32 s{sWSRD}, s{sQ}\n  s_mov_b32 s{sWSRD+1}, s{sQ+1}\n  s_movk_i32 s{sWSRD+2}, 0x4000\n  s_mov_b32 s{sWSRD+3}, 0x20000")
    A(f"  s_lshr_b32 s{sTMP}, s{sWG}, 2\n  s_lshl_b32 s{sTMP}, s{sTMP}, 8")
    A(f"  v_add_u32 v{T+3}, s{sTMP}, v{T+3}")
    for j in range(4):
        A(f"  buffer_load_dwordx4 {vr(VT+j*4,4)}, v{T+3}, {sr(sWSRD,4)}, 0 offen offset:{j*64}")
    loadV(0); loadK(1); loadV(1)
    for p, val in ((sSCALE, 0x3e9837f0), (sLOG2E, 0x3fb8aa3c), (sISM, 0x3eb504f3), (sEPS, 0x358637bd)):
        A(f"  s_mov_b32 s{p}, {hex(val)}\n  s_mov_b32 s{p+1}, {hex(val)}")
    A(f"  s_mov_b32 s{sHI}, 0xffff0000\n  s_mov_b32 s{sPLO}, 0x05040100\n  s_mov_b32 s{sPHI}, 0x07060302")
    for r in range(4):
        m = sum(1 << (20 * g + r) for g in range(4))
        A(f"  s_mov_b32 s{sMD+2*r}, {hex(m & 0xffffffff)}\n  s_mov_b32 s{sMD+2*r+1}, {hex(m >> 32)}")
    A(f"  s_mov_b32 s{sMLO}, 0x00ff00ff\n  s_mov_b32 s{sMLO+1}, 0x00ff00ff")
    A(f"  v_mov_b32 v{XP+1}, 0\n  v_mov_b32 v{SEL+1}, 0")
    A(f"  v_mov_b32 v{T}, 0xbf00\n  v_mov_b32 v{T+1}, 0xbf000000")
    A(f"  v_cndmask_b32 v{SEL}, v{T+1}, v{T}, {sr(sMLO,2)}")
    for r in range(4): A(f"  v_mov_b32 v{ONES+r}, 0x3f803f80")
    for r in range(4): A(f"  v_mov_b32 v{ACCZ+r}, 0")
    for r in range(32): A(f"  v_mov_b32 v{ACC+r}, 0")

    def scale_unpack(a):
        for i in range(4):
            A(f"  v_lshlrev_b32 v{T+2*i}, 16, v{a+i}\n  v_and_b32 v{T+2*i+1}, s{sHI}, v{a+i}")
    def scale_rest(a):
        for i in range(4): A(f"  v_pk_mul_f32 {vr(T+2*i,2)}, {vr(T+2*i,2)}, {sr(sSCALE,2)}")
        for i in range(4): A(f"  v_cvt_pk_bf16_f32 v{a+i}, v{T+2*i}, v{T+2*i+1}")
    def unpack4(dst, p0, p1):
        A(f"  v_lshlrev_b32 v{dst}, 16, v{p0}\n  v_and_b32 v{dst+1}, s{sHI}, v{p0}")
        A(f"  v_lshlrev_b32 v{dst+2}, 16, v{p1}\n  v_and_b32 v{dst+3}, s{sHI}, v{p1}")
    def pack4(src, p0, p1):
        A(f"  v_cvt_pk_bf16_f32 v{p0}, v{src}, v{src+1}\n  v_cvt_pk_bf16_f32 v{p1}, v{src+2}, v{src+3}")
    def phi_tail():
        pack4(C, T, T+1); unpack4(C, T, T+1)
        A(f"  v_pk_mul_f32 {vr(C,2)}, {vr(C,2)}, {sr(sLOG2E,2)}\n  v_pk_mul_f32 {vr(C+2,2)}, {vr(C+2,2)}, {sr(sLOG2E,2)}")
        for r in range(4): A(f"  v_exp_f32 v{C+r}, v{C+r}")
        A("  s_nop 0")
        pack4(C, T, T+1); unpack4(C, T, T+1)
        A(f"  v_pk_mul_f32 {vr(C,2)}, {vr(C,2)}, {sr(sISM,2)}\n  v_pk_mul_f32 {vr(C+2,2)}, {vr(C+2,2)}, {sr(sISM,2)}")
        pack4(C, T, T+1); unpack4(C, T, T+1)
        A(f"  v_pk_add_f32 {vr(C,2)}, {vr(C,2)}, {sr(sEPS,2)}\n  v_pk_add_f32 {vr(C+2,2)}, {vr(C+2,2)}, {sr(sEPS,2)}")
        pack4(C, T, T+1)

    A("  s_waitcnt vmcnt(24)")
    for j in range(4):
        scale_unpack(VT+j*4); scale_rest(VT+j*4)
    A("  s_nop 1")
    for j in range(4):
        c0 = "0" if j == 0 else vr(D,4); c1 = "0" if j == 0 else vr(G0,4)
        A(f"  v_mfma_f32_16x16x32_bf16 {vr(D,4)}, {vr(OM1+j*4,4)}, {vr(VT+j*4,4)}, {c0}")
        A(f"  v_mfma_f32_16x16x32_bf16 {vr(G0,4)}, {vr(VT+j*4,4)}, {vr(VT+j*4,4)}, {c1}")
    for r in range(16): A(f"  v_cndmask_b32 v{OM0+r}, 0, v{OM1+r}, {sr(sMLO,2)}")
    for r in range(16): A(f"  v_cndmask_b32 v{OM1+r}, v{OM1+r}, 0, {sr(sMLO,2)}")
    pack4(D, T, T+1); unpack4(C, T, T+1)
    A(f"  v_cvt_pk_bf16_f32 v{T+2}, v{G0}, v{G0}")
    A(f"  v_and_b32 v{T+2}, s{sHI}, v{T+2}")
    for r in range(4): A(f"  v_fma_f32 v{C+r}, v{T+2}, -0.5, v{C+r}")
    phi_tail(); unpack4(PQ, T, T+1)

    A(f"  s_mov_b32 s{sCNT}, {NT//2}")
    A("  .p2align 3\nL_loop:")
    A(f"  s_sub_u32 s{sCNT}, s{sCNT}, 1")
    for b in range(2):
        if b == 0:
            A("  s_waitcnt vmcnt(24)")
        pend = None
        def mf(gi):
            t, j = gi >> 2, gi & 3
            a = KB[b] + gi * 4
            om = (OM1 if t else OM0) + j * 4
            g = G1 if t else G0
            A(f"  v_mfma_f32_16x16x32_bf16 {vr(D,4)}, {vr(a,4)}, {vr(om,4)}, {'0' if gi == 0 else vr(D,4)}")
            A(f"  v_mfma_f32_16x16x32_bf16 {vr(g,4)}, {vr(a,4)}, {vr(a,4)}, {'0' if j == 0 else vr(g,4)}")
        for gi in range(8):
            scale_unpack(KB[b] + gi * 4)
            if gi: mf(gi - 1)
            scale_rest(KB[b] + gi * 4)
        A("  s_nop 1")
        mf(7)
        A(f"  s_cmp_eq_u32 s{sCNT}, 0\n  s_cbranch_scc1 L_nk{b}")
        loadK(b)
        A(f"L_nk{b}:\n  s_nop 7")
        for r in range(4): A(f"  v_cvt_pk_bf16_f32 v{G0+r}, v{G0+r}, v{G1+r}")
        pack4(D, T, T+1)
        A(f"  v_cndmask_b32 v{XP}, 0, v{G0}, {sr(sMD,2)}")
        for r in range(1, 4): A(f"  v_cndmask_b32 v{XP}, v{XP}, v{G0+r}, {sr(sMD+2*r,2)}")
        unpack4(C, T, T+1)
        A("  s_nop 1")
        A(f"  v_mfma_f32_16x16x16_bf16 {vr(C,4)}, {vr(XP,2)}, {vr(SEL,2)}, {vr(C,4)}")
        A("  s_nop 7")
        phi_tail()
        A(f"  v_cndmask_b32 v{PA}, 0, v{T}, {sr(sMLO,2)}\n  v_cndmask_b32 v{PA+1}, 0, v{T+1}, {sr(sMLO,2)}")
        A(f"  v_cndmask_b32 v{PA+2}, v{T}, 0, {sr(sMLO,2)}\n  v_cndmask_b32 v{PA+3}, v{T+1}, 0, {sr(sMLO,2)}")
        A(f"  s_cbranch_scc1 L_lv{b}\n  s_waitcnt vmcnt(24)\n  s_branch L_gv{b}\nL_lv{b}:\n  s_waitcnt vmcnt({16 if b == 0 else 0})\nL_gv{b}:")
        def perms(q):
            bank = VT + (q & 1) * 8
            for h in range(2):
                for p in range(4):
                    A(f"  v_perm_b32 v{bank+h*4+p}, v{VB[b]+(2*p+1)*4+q}, v{VB[b]+(2*p)*4+q}, s{sPHI if h else sPLO}")
        def pv(q):
            bank = VT + (q & 1) * 8
            for h in range(2):
                e = 2 * q + h
                A(f"  v_mfma_f32_16x16x32_bf16 {vr(ACC+e*4,4)}, {vr(PA,4)}, {vr(bank+h*4,4)}, {vr(ACC+e*4,4)}")
        perms(0)
        A(f"  v_mfma_f32_16x16x32_bf16 {vr(ACCZ,4)}, {vr(PA,4)}, {vr(ONES,4)}, {vr(ACCZ,4)}")
        perms(1); pv(0); perms(2); pv(1); perms(3); pv(2)
        A(f"  s_cbranch_scc1 L_nv{b}")
        loadV(b)
        if b == 0:
            A(f"  s_waitcnt vmcnt(24)\n  s_branch L_gk1\nL_nv0:\n  s_waitcnt vmcnt(8)\nL_gk1:")
            pv(3)
        else:
            pv(3)
            A("  s_branch L_loop\nL_nv1:")
            A("  s_nop 0")
            pv(3)

    if stamps: A("  s_memrealtime s[82:83]")
    A(f"  v_lshlrev_b32 v{vTMP}, 4, v{vLANE}")
    A(f"  s_lshl_b32 s{sTMP}, s{sWAVE}, 12")
    A(f"  v_add_u32 v{vK}, s{sTMP}, v{vTMP}")
    A(f"  s_lshl_b32 s{sTMP}, s{sWAVE}, 10")
    A(f"  v_add_u32 v{vV}, s{sTMP}, v{vTMP}")
    for r in range(4): A(f"  v_mov_b32 v{T+r}, v{ACCZ+r}")
    A("  s_nop 1")
    for r in range(4): A(f"  v_permlane32_swap_b32 v{ACCZ+r}, v{T+r}")
    for r in range(4): A(f"  v_add_f32 v{ACCZ+r}, v{ACCZ+r}, v{T+r}")
    A(f"  ds_write_b128 v{vV}, {vr(ACCZ,4)} offset:16384")
    for p in range(4):
        for r in range(4): A(f"  v_permlane32_swap_b32 v{ACC+p*4+r}, v{ACC+(p+4)*4+r}")
        for r in range(0, 4, 2): A(f"  v_pk_add_f32 {vr(ACC+p*4+r,2)}, {vr(ACC+p*4+r,2)}, {vr(ACC+(p+4)*4+r,2)}")
        A(f"  ds_write_b128 v{vK}, {vr(ACC+p*4,4)} offset:{p*1024}")
    A(f"  s_lshr_b32 s{sTMP}, s{sWG}, 2")
    A(f"  s_lshl_b32 s{sTMP+1}, s{sTMP}, 15")
    A(f"  s_add_u32 s{sWSRD}, s{sWS}, s{sTMP+1}\n  s_addc_u32 s{sWSRD+1}, s{sWS+1}, 0")
    A(f"  s_mov_b32 s{sWSRD+2}, 0x8000\n  s_mov_b32 s{sWSRD+3}, 0x20000")
    A(f"  s_and_b32 s{sTMP+2}, s{sWG}, 3\n  s_lshl_b32 s{sTMP+2}, s{sTMP+2}, 13")
    A("  s_waitcnt lgkmcnt(0)\n  s_barrier")
    R = KB[0]
    for w in range(4): A(f"  ds_read_b128 {vr(R+w*4,4)}, v{vV} offset:{w*4096}")
    for w in range(4): A(f"  ds_read_b128 {vr(R+16+w*4,4)}, v{vTMP} offset:{16384+w*1024}")
    def sum4(base):
        for r in range(0, 4, 2):
            A(f"  v_pk_add_f32 {vr(base+r,2)}, {vr(base+r,2)}, {vr(base+4+r,2)}")
        for r in range(0, 4, 2):
            A(f"  v_pk_add_f32 {vr(base+8+r,2)}, {vr(base+8+r,2)}, {vr(base+12+r,2)}")
        for r in range(0, 4, 2):
            A(f"  v_pk_add_f32 {vr(base+r,2)}, {vr(base+r,2)}, {vr(base+8+r,2)}")
    A("  s_waitcnt lgkmcnt(4)")
    sum4(R)
    A(f"  buffer_store_dwordx4 {vr(R,4)}, v{vV}, {sr(sWSRD,4)}, s{sTMP+2} offen sc0 sc1")
    A("  s_waitcnt lgkmcnt(0)")
    sum4(R + 16)
    A(f"  v_and_b32 v{T}, 16, v{vLANE}\n  v_lshlrev_b32 v{T}, 4, v{T}")
    A(f"  s_lshl_b32 s{sTMP+3}, s{sWAVE}, 10\n  s_add_u32 s{sTMP+3}, s{sTMP+3}, 0x1000")
    A(f"  v_add_u32 v{T}, s{sTMP+3}, v{T}")
    A("  s_mov_b64 exec, 0x10001")
    A(f"  buffer_store_dwordx4 {vr(R+16,4)}, v{T}, {sr(sWSRD,4)}, s{sTMP+2} offen sc0 sc1")
    A("  s_mov_b64 exec, -1")
    A(f"  s_mov_b32 s{sXSRD}, s{sDBG}\n  s_mov_b32 s{sXSRD+1}, s{sDBG+1}\n  s_movk_i32 s{sXSRD+2}, 0x100\n  s_mov_b32 s{sXSRD+3}, 0x20000")
    if dbgstamp:
        A(f"  s_lshr_b32 s{sTMP+4}, s{sTMP}, 1\n  s_lshl_b32 s{sTMP+4}, s{sTMP+4}, 2\n  s_add_u32 s{sTMP+4}, s{sTMP+4}, 128")
        A(f"  s_and_b32 s88, s{sTMP}, 1\n  s_lshl_b32 s88, s88, 4\n  s_lshl_b32 s89, 1, s88")
    else:
        A(f"  s_lshl_b32 s{sTMP+4}, s{sTMP}, 2")
    A("  s_waitcnt vmcnt(0)\n  s_barrier")
    A(f"  s_cmp_lg_u32 s{sWAVE}, 0\n  s_cbranch_scc1 L_wait")
    A(f"  v_mov_b32 v{T+1}, {'s89' if dbgstamp else '1'}\n  v_mov_b32 v{T+2}, 0\n  s_mov_b64 exec, 1")
    A(f"  buffer_atomic_add v{T+1}, off, {sr(sXSRD,4)}, s{sTMP+4} sc0 sc1")
    A("  s_waitcnt vmcnt(0)")
    A(f"  ds_write_b32 v{T+2}, v{T+1} offset:20480")
    A("  s_mov_b64 exec, -1\n  s_waitcnt lgkmcnt(0)")
    A("L_wait:\n  s_barrier")
    A(f"  v_mov_b32 v{T+2}, 0")
    A(f"  ds_read_b32 v{T+1}, v{T+2} offset:20480")
    A("  s_waitcnt lgkmcnt(0)")
    A(f"  v_readfirstlane_b32 s{sTMP+5}, v{T+1}")
    A("  s_nop 3")
    if dbgstamp:
        A(f"  s_lshr_b32 s{sTMP+5}, s{sTMP+5}, s88\n  s_and_b32 s{sTMP+5}, s{sTMP+5}, 0xffff")
    A(f"  s_cmp_lg_u32 s{sTMP+5}, 3\n  s_cbranch_scc1 L_fin")
    for w in range(4):
        A(f"  s_mov_b32 s{sTMP+6}, {w*8192}")
        A(f"  buffer_load_dwordx4 {vr(R+w*4,4)}, v{vV}, {sr(sWSRD,4)}, s{sTMP+6} offen sc0 sc1")
        A(f"  buffer_load_dwordx4 {vr(R+16+w*4,4)}, v{T}, {sr(sWSRD,4)}, s{sTMP+6} offen sc0 sc1")
    A(f"  s_mov_b32 s{sXSRD}, s{sOUT}\n  s_mov_b32 s{sXSRD+1}, s{sOUT+1}\n  s_movk_i32 s{sXSRD+2}, 0x4000\n  s_mov_b32 s{sXSRD+3}, 0x20000")
    A(f"  v_and_b32 v{T+4}, 15, v{vLANE}\n  v_lshlrev_b32 v{T+4}, 4, v{T+4}")
    A(f"  v_lshrrev_b32 v{T+5}, 5, v{vLANE}")
    A(f"  v_lshl_add_u32 v{T+4}, v{T+5}, 3, v{T+4}")
    A(f"  s_lshl_b32 s{sTMP+6}, s{sTMP}, 8\n  s_lshl_b32 s{sTMP+7}, s{sWAVE}, 1\n  s_add_u32 s{sTMP+6}, s{sTMP+6}, s{sTMP+7}")
    A(f"  v_add_u32 v{T+4}, s{sTMP+6}, v{T+4}")
    A("  s_waitcnt vmcnt(0)")
    sum4(R); sum4(R + 16)
    pack4(R, T, T+1); pack4(R+16, T+2, T+3)
    unpack4(R, T, T+1); unpack4(R+16, T+2, T+3)
    A(f"  v_mul_f32 v{R}, v{R}, v{PQ}\n  v_mul_f32 v{R+16}, v{R+16}, v{PQ}")
    for r in range(1, 4):
        A(f"  v_fmac_f32 v{R}, v{R+r}, v{PQ+r}\n  v_fmac_f32 v{R+16}, v{R+16+r}, v{PQ+r}")
    A(f"  v_mov_b32 v{R+1}, v{R}\n  v_mov_b32 v{R+17}, v{R+16}\n  s_nop 1")
    A(f"  v_permlane16_swap_b32 v{R}, v{R+1}\n  v_permlane16_swap_b32 v{R+16}, v{R+17}")
    A(f"  v_add_f32 v{R}, v{R}, v{R+1}\n  v_add_f32 v{R+16}, v{R+16}, v{R+17}")
    A(f"  v_cvt_pk_bf16_f32 v{T}, v{R}, v{R+16}")
    A(f"  v_lshlrev_b32 v{R}, 16, v{T}\n  v_and_b32 v{R+1}, s{sHI}, v{T}")
    A(f"  v_add_f32 v{R+1}, s{sEPS}, v{R+1}")
    A(f"  v_cvt_pk_bf16_f32 v{T}, v{R+1}, v{R+1}")
    A(f"  v_and_b32 v{R+1}, s{sHI}, v{T}")
    n, d = R, R+1; a, b_, c, e, f = R+2, R+3, R+4, R+5, R+6
    A(f"""  v_div_scale_f32 v{a}, {sr(sTMP+6,2)}, v{d}, v{d}, v{n}
  v_div_scale_f32 v{b_}, vcc, v{n}, v{d}, v{n}
  v_rcp_f32 v{c}, v{a}
  s_nop 0
  v_fma_f32 v{e}, -v{a}, v{c}, 1.0
  v_fmac_f32 v{c}, v{e}, v{c}
  v_mul_f32 v{e}, v{b_}, v{c}
  v_fma_f32 v{f}, -v{a}, v{e}, v{b_}
  v_fmac_f32 v{e}, v{f}, v{c}
  v_fma_f32 v{a}, -v{a}, v{e}, v{b_}
  v_div_fmas_f32 v{a}, v{a}, v{c}, v{e}
  v_div_fixup_f32 v{a}, v{a}, v{d}, v{n}
  v_cvt_pk_bf16_f32 v{a}, v{a}, v{a}""")
    A("  s_mov_b32 exec_lo, 0xffff\n  s_mov_b32 exec_hi, 0xffff")
    A(f"  buffer_store_short v{a}, v{T+4}, {sr(sXSRD,4)}, 0 offen")
    A("L_fin:")
    if stamps:
        A("  s_mov_b64 exec, 1\n  s_waitcnt vmcnt(0)\n  s_memrealtime s[84:85]\n  s_getreg_b32 s86, hwreg(HW_REG_XCC_ID)\n  s_waitcnt lgkmcnt(0)")
        A(f"  s_lshl_b32 s87, s{sWG}, 2\n  s_add_u32 s87, s87, s{sWAVE}\n  s_lshl_b32 s87, s87, 4\n  s_add_u32 s87, s87, 0x1000000")
        A(f"  v_mov_b32 v4, s80\n  v_mov_b32 v5, s86\n  v_mov_b32 v6, s84\n  v_mov_b32 v7, s82\n  v_mov_b32 v1, s87")
        A(f"  global_store_dwordx4 v1, v[4:7], {sr(sWS,2)}")
        if dbgstamp:
            A(f"  v_mov_b32 v1, 0\n  v_not_b32 v4, v4\n  v_not_b32 v5, v7")
            A(f"  global_atomic_umax v1, v6, {sr(sDBG,2)} sc1")
            A(f"  global_atomic_umax v1, v4, {sr(sDBG,2)} offset:4 sc1")
            A(f"  global_atomic_umax v1, v7, {sr(sDBG,2)} offset:8 sc1")
            A(f"  global_atomic_umax v1, v5, {sr(sDBG,2)} offset:12 sc1")
    A("L_done:\n  s_endpgm")
    A(f""".section .rodata,"a"
.p2align 6
.amdhsa_kernel {NAME}
  .amdhsa_next_free_vgpr 256
  .amdhsa_next_free_sgpr 96
  .amdhsa_accum_offset 256
  .amdhsa_group_segment_fixed_size 0
  .amdhsa_kernarg_size 56
  .amdhsa_user_sgpr_count 2
  .amdhsa_user_sgpr_kernarg_segment_ptr 1
  .amdhsa_system_sgpr_workgroup_id_x 1
  .amdhsa_float_denorm_mode_32 3
.end_amdhsa_kernel""")
    return "\n".join(L) + "\n"

if __name__ == "__main__":
    kw = eval("dict(" + (sys.argv[2] if len(sys.argv) > 2 else "") + ")")
    open(sys.argv[1], "w").write(gen(**kw))
```

```python
import sys

NAME = "standalone__linear_kernel_rfa__decode_kernel"
HDR = """; Kernarg layout for this problem (56 bytes, ptrs only, base s[0:1]):
"""

vLANE, vA, vX, vTMP = 0, 1, 2, 3
D, G0, G1, C, PA = 4, 8, 12, 16, 20
XP, SEL, ONES = 24, 26, 28
T = 32
ACCZ, PQ, ACC = 40, 44, 48
OM0, OM1 = 80, 96
XV = 112
XK = 144
DT = 160
KS = 176
ID = 184
RING = 188
NVGPR = 220
sWG, sWAVE = 2, 3
sHEAD, sQTR = 4, 5
sKSRD, sVSRD, sWSRD, sXSRD = 8, 12, 16, 20
sSCALE, sLOG2E, sISM, sEPS = 24, 26, 28, 30
sHI, sPLO, sPHI, sT1 = 32, 33, 34, 35
sMD = 36
sMLO = 44
sCNT, sSLOT = 46, 47
sQ, sKP, sVP, sOM, sOUT, sDBG, sWS = 48, 50, 52, 54, 56, 58, 60
sTMP = 62
sDSRD = 72
LDS_Z, LDS_PQ = 16384, 20480

def vr(a, n): return f"v[{a}:{a+n-1}]"
def sr(a, n): return f"s[{a}:{a+n-1}]"

def gen(stamps=False, lds=81920 + 512, flags="nt", order="xhead", hf="sc1", at="loopend", Dp=5, abl=(),
        nohelper=False, noepi=False, hdelay=0, touch=False, prog=False, burst=False, warm=False, dpat=None, sched=0, nosoff=False, noom=False, noprep=False, omlate=False, inl=True, bar=(), bar0=False, barpre=False):
    L = []
    def A(s):
        for x in s.split("\n"): L.append(x)
    def stamp(name):
        if stamps and at == name: A("  s_memrealtime s[82:83]")
    NWG = 256; NT = 16
    SIZE, T1OFF, STEP = 2097152, 65536, 131072
    A(HDR + f"; @launch grid=({NWG},1,1) block=(320,1,1) lds={lds}")
    A('.amdgcn_target "amdgcn-amd-amdhsa--gfx950"\n.text')
    A(f".globl {NAME}\n.p2align 8\n.type {NAME},@function\n{NAME}:")
    A(f"  s_cmp_ge_u32 s{sWG}, {NWG}\n  s_cbranch_scc1 L_done")
    if stamps: A("  s_memrealtime s[80:81]\n  s_memtime s[90:91]")
    A(f"  s_load_dwordx8 {sr(sQ,8)}, s[0:1], 0")
    A(f"  s_load_dwordx4 {sr(sOUT,4)}, s[0:1], 32")
    A(f"  s_load_dwordx2 {sr(sWS,2)}, s[0:1], 48")
    A(f"  v_lshrrev_b32 v{vTMP}, 6, v0")
    A(f"  v_and_b32 v{vLANE}, 63, v0")
    A(f"  v_readfirstlane_b32 s{sWAVE}, v{vTMP}")
    if order == "xhead":
        A(f"  s_lshr_b32 s{sHEAD}, s{sWG}, 5\n  s_lshl_b32 s{sHEAD}, s{sHEAD}, 3\n  s_and_b32 s{sTMP}, s{sWG}, 7\n  s_add_u32 s{sHEAD}, s{sHEAD}, s{sTMP}")
        A(f"  s_bfe_u32 s{sQTR}, s{sWG}, 0x20003")
    else:
        A(f"  s_lshr_b32 s{sHEAD}, s{sWG}, 2\n  s_and_b32 s{sQTR}, s{sWG}, 3")
    A(f"  v_lshlrev_b32 v{vTMP}, 4, v{vLANE}")
    A(f"  v_and_b32 v{T+3}, 48, v{vLANE}")
    A(f"  v_and_b32 v{T}, 7, v{vLANE}")
    A(f"  v_lshlrev_b32 v{T}, 8, v{T}")
    A(f"  s_lshl_b32 s{sTMP}, s{sQTR}, 2\n  s_add_u32 s{sTMP}, s{sTMP}, s{sWAVE}\n  s_lshl_b32 s{sTMP}, s{sTMP}, 12")
    A(f"  v_add_u32 v{vA}, s{sTMP}, v{vTMP}")
    A(f"  v_lshl_add_u32 v{T+1}, v{T+3}, 2, v{T}")
    A(f"  s_mov_b32 s{sT1}, {T1OFF}")
    A(f"  s_lshl_b32 s{sTMP}, s{sHEAD}, 21\n  s_lshr_b32 s{sTMP+1}, s{sHEAD}, 11")
    A(f"  s_mov_b32 s{sKSRD+2}, {SIZE}\n  s_mov_b32 s{sKSRD+3}, 0x20000")
    A(f"  s_mov_b32 s{sVSRD+2}, {SIZE}\n  s_mov_b32 s{sVSRD+3}, 0x20000")
    A(f"  s_movk_i32 s{sXSRD+2}, 0x800\n  s_mov_b32 s{sXSRD+3}, 0x20000")
    A("  s_waitcnt lgkmcnt(0)")
    A(f"  s_mov_b32 s{sXSRD}, s{sOM}\n  s_mov_b32 s{sXSRD+1}, s{sOM+1}")
    A(f"  s_add_u32 s{sKSRD}, s{sKP}, s{sTMP}\n  s_addc_u32 s{sKSRD+1}, s{sKP+1}, s{sTMP+1}")
    A(f"  s_add_u32 s{sVSRD}, s{sVP}, s{sTMP}\n  s_addc_u32 s{sVSRD+1}, s{sVP+1}, s{sTMP+1}")
    A(f"  s_cmp_eq_u32 s{sWAVE}, 4\n  s_cbranch_scc1 L_helper")
    if barpre: A("  s_barrier")
    stamp("kernarg")

    def issue(i):
        i %= 16
        piece, r = i >> 2, i & 3
        srd = sVSRD if piece & 1 else sKSRD
        so = f"s{sT1}" if piece >> 1 and not nosoff else "0"
        A(f"  buffer_load_dwordx4 {vr(RING+(i&7)*4,4)}, v{vA}, {sr(srd,4)}, {so} offen offset:{r*1024} {flags}")
        if nosoff:
            if i & 7 == 7: A(f"  v_add_u32 v{vA}, {hex(STEP//2)}, v{vA}")
        elif i == 15: A(f"  v_add_u32 v{vA}, {hex(STEP)}, v{vA}")
    def consts():
        for p, val in ((sSCALE, 0x3e9837f0), (sLOG2E, 0x3fb8aa3c), (sISM, 0x3eb504f3), (sEPS, 0x358637bd)):
            A(f"  s_mov_b32 s{p}, {hex(val)}\n  s_mov_b32 s{p+1}, {hex(val)}")
        A(f"  s_mov_b32 s{sHI}, 0xffff0000")
    def ws_srd():
        A(f"  s_lshl_b32 s{sTMP}, s{sHEAD}, 15")
        A(f"  s_add_u32 s{sWSRD}, s{sWS}, s{sTMP}\n  s_addc_u32 s{sWSRD+1}, s{sWS+1}, 0")
        A(f"  s_mov_b32 s{sWSRD+2}, 0x8000\n  s_mov_b32 s{sWSRD+3}, 0x20000")
        A(f"  s_lshl_b32 s{sSLOT}, s{sQTR}, 13")

    dd = list(dpat) if dpat else [Dp] * 16
    Dp = dd[15]
    W = XV
    for r in range(0 if noom else 4):
        A(f"  buffer_load_dwordx4 {vr(W+r*4,4)}, v{T+1}, {sr(sXSRD,4)}, 0 offen offset:{r*16}")
    n0 = 8 if burst else Dp
    for i in range(n0): issue(i)
    stamp("issued")
    consts()
    A(f"  s_mov_b32 s{sPLO}, 0x05040100\n  s_mov_b32 s{sPHI}, 0x07060302")
    for r in range(4):
        m = sum(1 << (20 * g + r) for g in range(4))
        A(f"  s_mov_b32 s{sMD+2*r}, {hex(m & 0xffffffff)}\n  s_mov_b32 s{sMD+2*r+1}, {hex(m >> 32)}")
    A(f"  s_mov_b32 s{sMLO}, 0x00ff00ff\n  s_mov_b32 s{sMLO+1}, 0x00ff00ff")
    A(f"  v_mov_b32 v{XP+1}, 0\n  v_mov_b32 v{SEL+1}, 0")
    A(f"  v_mov_b32 v{T}, 0xbf00\n  v_mov_b32 v{T+1}, 0xbf000000")
    A(f"  v_cndmask_b32 v{SEL}, v{T+1}, v{T}, {sr(sMLO,2)}")
    A(f"  v_mov_b32 v{T}, 0x3f80\n  v_mov_b32 v{T+1}, 0x3f800000")
    for k in range(2):
        A(f"  v_cndmask_b32 v{ID+k}, 0, v{T}, {sr(sMD+4*k,2)}")
        A(f"  v_cndmask_b32 v{ID+k}, v{ID+k}, v{T+1}, {sr(sMD+4*k+2,2)}")
    for r in range(4): A(f"  v_mov_b32 v{ONES+r}, 0x3f803f80")
    for r in range(4): A(f"  v_mov_b32 v{ACCZ+r}, 0")
    for r in range(32): A(f"  v_mov_b32 v{ACC+r}, 0")
    ws_srd()

    def scale_unpack(a):
        for i in range(4):
            A(f"  v_lshlrev_b32 v{T+2*i}, 16, v{a+i}\n  v_and_b32 v{T+2*i+1}, s{sHI}, v{a+i}")
    def scale_rest(a):
        for i in range(4): A(f"  v_pk_mul_f32 {vr(T+2*i,2)}, {vr(T+2*i,2)}, {sr(sSCALE,2)}")
        for i in range(4): A(f"  v_cvt_pk_bf16_f32 v{a+i}, v{T+2*i}, v{T+2*i+1}")
    def unpack4(dst, p0, p1):
        A(f"  v_lshlrev_b32 v{dst}, 16, v{p0}\n  v_and_b32 v{dst+1}, s{sHI}, v{p0}")
        A(f"  v_lshlrev_b32 v{dst+2}, 16, v{p1}\n  v_and_b32 v{dst+3}, s{sHI}, v{p1}")
    def pack4(src, p0, p1):
        A(f"  v_cvt_pk_bf16_f32 v{p0}, v{src}, v{src+1}\n  v_cvt_pk_bf16_f32 v{p1}, v{src+2}, v{src+3}")
    def phi_tail():
        pack4(C, T, T+1); unpack4(C, T, T+1)
        A(f"  v_pk_mul_f32 {vr(C,2)}, {vr(C,2)}, {sr(sLOG2E,2)}\n  v_pk_mul_f32 {vr(C+2,2)}, {vr(C+2,2)}, {sr(sLOG2E,2)}")
        for r in range(4): A(f"  v_exp_f32 v{C+r}, v{C+r}")
        A("  s_nop 0")
        pack4(C, T, T+1); unpack4(C, T, T+1)
        A(f"  v_pk_mul_f32 {vr(C,2)}, {vr(C,2)}, {sr(sISM,2)}\n  v_pk_mul_f32 {vr(C+2,2)}, {vr(C+2,2)}, {sr(sISM,2)}")
        pack4(C, T, T+1); unpack4(C, T, T+1)
        A(f"  v_pk_add_f32 {vr(C,2)}, {vr(C,2)}, {sr(sEPS,2)}\n  v_pk_add_f32 {vr(C+2,2)}, {vr(C+2,2)}, {sr(sEPS,2)}")
        pack4(C, T, T+1)

    A(f"  s_waitcnt vmcnt({n0})")
    stamp("firstdata")
    for q in range(0 if noprep else 4):
        for h in range(2):
            for rr in range(2):
                A(f"  v_perm_b32 v{OM1+q*4+h*2+rr}, v{W+(2*rr+1)*4+q}, v{W+(2*rr)*4+q}, s{sPHI if h else sPLO}")
    for r in range(0 if noprep else 16): A(f"  v_cndmask_b32 v{OM0+r}, 0, v{OM1+r}, {sr(sMLO,2)}")
    for r in range(0 if noprep else 16): A(f"  v_cndmask_b32 v{OM1+r}, v{OM1+r}, 0, {sr(sMLO,2)}")
    if bar0: A("  s_barrier")
    stamp("loopstart")
    def pair_perms(n):
        piece, pp = n >> 2, (n & 3) >> 1
        a, b = RING + ((n - 1) & 7) * 4, RING + (n & 7) * 4
        for q in range(4):
            for h in range(2):
                e = 2 * q + h
                dst = XV + 4 * e + 2 * (piece >> 1) + pp if piece & 1 else XK + 2 * e + pp
                A(f"  v_perm_b32 v{dst}, v{b+q}, v{a+q}, s{sPHI if h else sPLO}")
    entry = None
    if burst:
        entry = next(n for n in range(16) if n - 1 + dd[n - 1] >= 7)
        assert entry - 1 + dd[entry - 1] == 7 and entry in (2, 3)
        A("  s_waitcnt vmcnt(6)")
        pair_perms(1)
        A(f"  s_mov_b32 s{sCNT}, {NT - 1}\n  s_cmp_eq_u32 s{sCNT}, 0\n  s_branch L_join")
    else:
        A(f"  s_mov_b32 s{sCNT}, {NT}")
    A("  .p2align 3\nL_loop:")
    loop_start = len(L)
    A(f"  s_sub_u32 s{sCNT}, s{sCNT}, 1")
    if hdelay:
        A(f"  s_cmp_lg_u32 s{sCNT}, {NT - 1 - hdelay}\n  s_cbranch_scc1 L_nobar\n  s_barrier\nL_nobar:")
    A(f"  s_cmp_eq_u32 s{sCNT}, 0")
    ool = []
    def service(n):
        if n == entry: A("L_join:")
        prev = n - 1 + dd[n - 1]
        A(f"  s_waitcnt vmcnt({prev - n})")
        if n in bar: A("  s_barrier")
        todo = list(range(prev + 1, n + dd[n] + 1))
        for i in todo:
            if i < 16: issue(i)
        nxt = [i for i in todo if i >= 16]
        if nxt or prev >= 16:
            if inl:
                A(f"  s_cbranch_scc1 L_last{n}")
                for i in nxt: issue(i)
                A(f"  s_branch L_back{n}\nL_last{n}:\n  s_waitcnt vmcnt({15-n})\nL_back{n}:")
            else:
                A(f"  s_cbranch_scc1 L_last{n}")
                for i in nxt: issue(i)
                A(f"L_back{n}:")
                ool.append(f"L_last{n}:\n  s_waitcnt vmcnt({15-n})\n  s_branch L_back{n}")
        if n & 1: pair_perms(n)
    def steps(t, j0):
        g = G1 if t else G0
        om = OM1 if t else OM0
        for k in range(4):
            A(f"  v_mfma_f32_16x16x16_bf16 {vr(DT+4*k,4)}, {vr(XK+2*(2*j0+k),2)}, {vr(ID,2)}, 0")
        A("  s_nop 5")
        def mul(k):
            for r in (0, 2): A(f"  v_pk_mul_f32 {vr(DT+4*k+r,2)}, {vr(DT+4*k+r,2)}, {sr(sSCALE,2)}")
        def cvt(s):
            for k in range(2):
                for r in range(2):
                    A(f"  v_cvt_pk_bf16_f32 v{KS+4*s+2*k+r}, v{DT+4*(2*s+k)+2*r}, v{DT+4*(2*s+k)+2*r+1}")
        def mf(s):
            j = j0 + s
            A(f"  v_mfma_f32_16x16x32_bf16 {vr(D,4)}, {vr(KS+4*s,4)}, {vr(om+4*j,4)}, {'0' if (t, j) == (0, 0) else vr(D,4)}")
            A(f"  v_mfma_f32_16x16x32_bf16 {vr(g,4)}, {vr(KS+4*s,4)}, {vr(KS+4*s,4)}, {'0' if j == 0 else vr(g,4)}")
        mul(0); mul(1); cvt(0); mul(2); mul(3); mf(0); cvt(1)
        A("  s_nop 1")
        mf(1)
    def steps1(t, j):
        g = G1 if t else G0
        om = OM1 if t else OM0
        for k in range(2):
            A(f"  v_mfma_f32_16x16x16_bf16 {vr(DT+4*k,4)}, {vr(XK+2*(2*j+k),2)}, {vr(ID,2)}, 0")
        A("  s_nop 6")
        for k in range(2):
            for r in (0, 2): A(f"  v_pk_mul_f32 {vr(DT+4*k+r,2)}, {vr(DT+4*k+r,2)}, {sr(sSCALE,2)}")
        for k in range(2):
            for r in range(2):
                A(f"  v_cvt_pk_bf16_f32 v{KS+2*k+r}, v{DT+4*k+2*r}, v{DT+4*k+2*r+1}")
        A("  s_nop 1")
        A(f"  v_mfma_f32_16x16x32_bf16 {vr(D,4)}, {vr(KS,4)}, {vr(om+4*j,4)}, {'0' if (t, j) == (0, 0) else vr(D,4)}")
        A(f"  v_mfma_f32_16x16x32_bf16 {vr(g,4)}, {vr(KS,4)}, {vr(KS,4)}, {'0' if j == 0 else vr(g,4)}")
    def phi1():
        for r in range(4): A(f"  v_cvt_pk_bf16_f32 v{G0+r}, v{G0+r}, v{G1+r}")
        pack4(D, T, T+1)
        A(f"  v_cndmask_b32 v{XP}, 0, v{G0}, {sr(sMD,2)}")
        for r in range(1, 4): A(f"  v_cndmask_b32 v{XP}, v{XP}, v{G0+r}, {sr(sMD+2*r,2)}")
        unpack4(C, T, T+1)
        A("  s_nop 1")
        A(f"  v_mfma_f32_16x16x16_bf16 {vr(C,4)}, {vr(XP,2)}, {vr(SEL,2)}, {vr(C,4)}")
    def phi2():
        A("  s_nop 5")
        phi_tail()
        A(f"  v_cndmask_b32 v{PA}, 0, v{T}, {sr(sMLO,2)}\n  v_cndmask_b32 v{PA+1}, 0, v{T+1}, {sr(sMLO,2)}")
        A(f"  v_cndmask_b32 v{PA+2}, v{T}, 0, {sr(sMLO,2)}\n  v_cndmask_b32 v{PA+3}, v{T+1}, 0, {sr(sMLO,2)}")
    def pvall():
        A(f"  v_mfma_f32_16x16x32_bf16 {vr(ACCZ,4)}, {vr(PA,4)}, {vr(ONES,4)}, {vr(ACCZ,4)}")
        A("  s_nop 0")
        for e in range(8):
            A(f"  v_mfma_f32_16x16x32_bf16 {vr(ACC+e*4,4)}, {vr(PA,4)}, {vr(XV+e*4,4)}, {vr(ACC+e*4,4)}")
    chunks = {3: lambda: (A("  s_nop 1"), steps(0, 0)), 4: lambda: steps(0, 2),
              11: lambda: (A("  s_nop 1"), steps(1, 0)), 12: lambda: steps(1, 2),
              13: phi1, 14: phi2, 15: pvall}
    if sched == 1:
        def one(t, j): steps1(t, j)
        chunks = {3: lambda: (A("  s_nop 1"), steps1(0, 0)), 4: lambda: steps1(0, 1), 5: lambda: steps1(0, 2), 6: lambda: steps1(0, 3),
                  11: lambda: (A("  s_nop 1"), steps(1, 0)), 12: lambda: steps(1, 2),
                  13: phi1, 14: phi2, 15: pvall}
    for n in range(16):
        service(n)
        if n in chunks: chunks[n]()
    if prog:
        A(f"  s_memrealtime s[88:89]\n  s_mov_b32 m0, s{sCNT}\n  s_waitcnt lgkmcnt(0)\n  v_writelane_b32 v{vLANE}, s88, m0")
    A("  s_cbranch_scc0 L_loop")
    if abl:
        body = L[loop_start:]; del L[loop_start:]
        for x in body:
            t = x.strip()
            if "valu" in abl and t.startswith("v_") and not t.startswith("v_mfma") and not t.startswith("v_add_u32") and not t.startswith("v_writelane"): continue
            if "mfma" in abl and t.startswith("v_mfma"): continue
            L.append(x)

    stamp("loopend")
    if noepi: A("  s_branch L_fin")
    R = OM0
    P = XV
    A(f"  s_lshl_b32 s{sTMP}, s{sWAVE}, 10")
    A(f"  v_add_u32 v{vX}, s{sTMP}, v{vTMP}")
    A(f"  v_and_b32 v{T+5}, 0x100, v{vTMP}")
    A(f"  s_add_u32 s{sTMP}, s{sTMP}, 0x1000")
    A(f"  v_add_u32 v{T+5}, s{sTMP}, v{T+5}")
    A(f"  s_lshl_b32 s{sTMP}, s{sWAVE}, 12")
    A(f"  v_add_u32 v{vA}, s{sTMP}, v{vTMP}")
    for r in range(4): A(f"  v_mov_b32 v{T+r}, v{ACCZ+r}")
    A("  s_nop 1")
    for r in range(4): A(f"  v_permlane32_swap_b32 v{ACCZ+r}, v{T+r}")
    for r in range(0, 4, 2): A(f"  v_pk_add_f32 {vr(ACCZ+r,2)}, {vr(ACCZ+r,2)}, {vr(T+r,2)}")
    A(f"  ds_write_b128 v{vX}, {vr(ACCZ,4)} offset:{LDS_Z}")
    for p in range(4):
        for r in range(4): A(f"  v_permlane32_swap_b32 v{ACC+p*4+r}, v{ACC+(p+4)*4+r}")
        for r in range(0, 4, 2): A(f"  v_pk_add_f32 {vr(ACC+p*4+r,2)}, {vr(ACC+p*4+r,2)}, {vr(ACC+(p+4)*4+r,2)}")
        A(f"  ds_write_b128 v{vA}, {vr(ACC+p*4,4)} offset:{p*1024}")
    for w in range(1, 4): A(f"  s_movk_i32 s{sTMP+5+w}, {hex(w*8192)}")
    A(f"  s_cmp_eq_u32 s{sQTR}, 0")
    A("  s_waitcnt lgkmcnt(0)\n  s_barrier")
    def poll_loads():
        for w in range(1, 4):
            A(f"  buffer_load_dwordx4 {vr(P+(w-1)*8,4)}, v{vX}, {sr(sWSRD,4)}, s{sTMP+5+w} offen {hf}")
            A(f"  buffer_load_dwordx4 {vr(P+(w-1)*8+4,4)}, v{T+5}, {sr(sWSRD,4)}, s{sTMP+5+w} offen {hf}")
    A(f"  s_cbranch_scc0 L_np")
    poll_loads()
    A(f"  ds_read_b128 {vr(PQ,4)}, v{vTMP} offset:{LDS_PQ}")
    A("L_np:")
    for w in range(4): A(f"  ds_read_b128 {vr(R+w*4,4)}, v{vX} offset:{w*4096}")
    for w in range(4): A(f"  ds_read_b128 {vr(R+16+w*4,4)}, v{vTMP} offset:{LDS_Z+w*1024}")
    def sum4(base):
        for r in range(0, 4, 2):
            A(f"  v_pk_add_f32 {vr(base+r,2)}, {vr(base+r,2)}, {vr(base+4+r,2)}")
        for r in range(0, 4, 2):
            A(f"  v_pk_add_f32 {vr(base+8+r,2)}, {vr(base+8+r,2)}, {vr(base+12+r,2)}")
        for r in range(0, 4, 2):
            A(f"  v_pk_add_f32 {vr(base+r,2)}, {vr(base+r,2)}, {vr(base+8+r,2)}")
    A(f"  s_cbranch_scc1 L_cons")
    A("  s_waitcnt lgkmcnt(4)")
    sum4(R)
    A(f"  buffer_store_dwordx4 {vr(R,4)}, v{vX}, {sr(sWSRD,4)}, s{sSLOT} offen {hf}")
    A("  s_waitcnt lgkmcnt(0)")
    sum4(R + 16)
    A("  s_mov_b64 exec, 0x10001")
    A(f"  buffer_store_dwordx4 {vr(R+16,4)}, v{T+5}, {sr(sWSRD,4)}, s{sSLOT} offen {hf}")
    A("  s_branch L_fin")
    A("L_cons:")
    A(f"  s_mov_b32 s{sXSRD}, s{sOUT}\n  s_mov_b32 s{sXSRD+1}, s{sOUT+1}\n  s_movk_i32 s{sXSRD+2}, 0x4000\n  s_mov_b32 s{sXSRD+3}, 0x20000")
    A(f"  v_and_b32 v{T+4}, 0xf0, v{vTMP}")
    A(f"  v_lshrrev_b32 v{T+6}, 9, v{vTMP}")
    A(f"  v_lshl_add_u32 v{T+4}, v{T+6}, 3, v{T+4}")
    A(f"  s_lshl_b32 s{sTMP+2}, s{sHEAD}, 8\n  s_lshl_b32 s{sTMP+3}, s{sWAVE}, 1\n  s_add_u32 s{sTMP+2}, s{sTMP+2}, s{sTMP+3}")
    A(f"  v_add_u32 v{T+4}, s{sTMP+2}, v{T+4}")
    A(f"  s_mov_b32 s{sTMP+4}, 0x40000")
    A("  s_waitcnt lgkmcnt(0)")
    sum4(R); sum4(R + 16)
    A("L_poll:\n  s_waitcnt vmcnt(0)")
    A(f"  v_max3_u32 v{T}, v{P}, v{P+1}, v{P+2}")
    A(f"  v_max3_u32 v{T+1}, v{P+3}, v{P+4}, v{P+5}")
    for i in range(6, 24, 4):
        A(f"  v_max3_u32 v{T}, v{T}, v{P+i}, v{P+i+1}")
        if i + 3 < 24: A(f"  v_max3_u32 v{T+1}, v{T+1}, v{P+i+2}, v{P+i+3}")
    A(f"  v_max_u32 v{T}, v{T}, v{T+1}")
    A(f"  v_cmp_eq_u32 vcc, -1, v{T}")
    A(f"  s_nop 1\n  s_cbranch_vccz L_got")
    A(f"  s_sub_u32 s{sTMP+4}, s{sTMP+4}, 1\n  s_cbranch_scc1 L_got")
    poll_loads()
    A("  s_branch L_poll\nL_got:")
    for base, off in ((R, 0), (R + 16, 4)):
        for r in range(0, 4, 2):
            A(f"  v_pk_add_f32 {vr(base+r,2)}, {vr(base+r,2)}, {vr(P+off+r,2)}")
        for r in range(0, 4, 2):
            A(f"  v_pk_add_f32 {vr(P+8+off+r,2)}, {vr(P+8+off+r,2)}, {vr(P+16+off+r,2)}")
    for base, off in ((R, 0), (R + 16, 4)):
        for r in range(0, 4, 2):
            A(f"  v_pk_add_f32 {vr(base+r,2)}, {vr(base+r,2)}, {vr(P+8+off+r,2)}")
    pack4(R, T, T+1); pack4(R+16, T+2, T+3)
    unpack4(R, T, T+1); unpack4(R+16, T+2, T+3)
    A(f"  v_mul_f32 v{R}, v{R}, v{PQ}\n  v_mul_f32 v{R+16}, v{R+16}, v{PQ}")
    for r in range(1, 4):
        A(f"  v_fmac_f32 v{R}, v{R+r}, v{PQ+r}\n  v_fmac_f32 v{R+16}, v{R+16+r}, v{PQ+r}")
    A(f"  v_mov_b32 v{R+1}, v{R}\n  v_mov_b32 v{R+17}, v{R+16}\n  s_nop 1")
    A(f"  v_permlane16_swap_b32 v{R}, v{R+1}\n  v_permlane16_swap_b32 v{R+16}, v{R+17}")
    A(f"  v_add_f32 v{R}, v{R}, v{R+1}\n  v_add_f32 v{R+16}, v{R+16}, v{R+17}")
    A(f"  v_cvt_pk_bf16_f32 v{T}, v{R}, v{R+16}")
    A(f"  v_lshlrev_b32 v{R}, 16, v{T}\n  v_and_b32 v{R+1}, s{sHI}, v{T}")
    A(f"  v_add_f32 v{R+1}, s{sEPS}, v{R+1}")
    A(f"  v_cvt_pk_bf16_f32 v{T}, v{R+1}, v{R+1}")
    A(f"  v_and_b32 v{R+1}, s{sHI}, v{T}")
    n, d = R, R+1; a, b_, c, e, f = R+2, R+3, R+4, R+5, R+6
    A(f"""  v_div_scale_f32 v{a}, {sr(sTMP+6,2)}, v{d}, v{d}, v{n}
  v_div_scale_f32 v{b_}, vcc, v{n}, v{d}, v{n}
  v_rcp_f32 v{c}, v{a}
  s_nop 0
  v_fma_f32 v{e}, -v{a}, v{c}, 1.0
  v_fmac_f32 v{c}, v{e}, v{c}
  v_mul_f32 v{e}, v{b_}, v{c}
  v_fma_f32 v{f}, -v{a}, v{e}, v{b_}
  v_fmac_f32 v{e}, v{f}, v{c}
  v_fma_f32 v{a}, -v{a}, v{e}, v{b_}
  v_div_fmas_f32 v{a}, v{a}, v{c}, v{e}
  v_div_fixup_f32 v{a}, v{a}, v{d}, v{n}
  v_cvt_pk_bf16_f32 v{a}, v{a}, v{a}""")
    A("  s_mov_b32 exec_lo, 0xffff\n  s_mov_b32 exec_hi, 0xffff")
    A(f"  buffer_store_short v{a}, v{T+4}, {sr(sXSRD,4)}, 0 offen")
    A("L_fin:")
    if prog:
        A("  s_mov_b64 exec, -1")
        A(f"  s_lshl_b32 s87, s{sWG}, 2\n  s_add_u32 s87, s87, s{sWAVE}\n  s_lshl_b32 s87, s87, 8\n  s_add_u32 s87, s87, 0x2000000")
        A(f"  v_lshrrev_b32 v1, 2, v{vTMP}\n  v_add_u32 v1, s87, v1\n  global_store_dword v1, v{vLANE}, {sr(sWS,2)}")
    if stamps:
        A("  s_mov_b64 exec, 1\n  s_waitcnt vmcnt(0)\n  s_memrealtime s[84:85]\n  s_memtime s[92:93]\n  s_getreg_b32 s86, hwreg(HW_REG_XCC_ID)\n  s_waitcnt lgkmcnt(0)")
        A("  s_sub_u32 s92, s92, s90\n  s_lshl_b32 s92, s92, 4\n  s_and_b32 s86, s86, 15\n  s_or_b32 s86, s86, s92")
        A(f"  s_lshl_b32 s87, s{sWG}, 2\n  s_add_u32 s87, s87, s{sWAVE}\n  s_lshl_b32 s87, s87, 4\n  s_add_u32 s87, s87, 0x1000000")
        A(f"  v_mov_b32 v4, s80\n  v_mov_b32 v5, s86\n  v_mov_b32 v6, s84\n  v_mov_b32 v7, s82\n  v_mov_b32 v1, s87")
        A(f"  global_store_dwordx4 v1, v[4:7], {sr(sWS,2)}")
    A("L_done:\n  s_endpgm")
    for x in ool: A(x)

    A("L_helper:")
    if hdelay: A("  s_barrier")
    if nohelper: A("  s_endpgm")
    if warm:
        A(f"  v_mov_b32 v{RING}, s{sWS}\n  v_mov_b32 v{RING+1}, s{sWS+1}")
        for i, p in enumerate((sDBG, sQ, sOUT), 1):
            A(f"  v_writelane_b32 v{RING}, s{p}, {i}\n  v_writelane_b32 v{RING+1}, s{p+1}, {i}")
        A(f"  s_mov_b64 exec, 15\n  global_load_dword v{RING+2}, {vr(RING,2)}, off sc1\n  s_mov_b64 exec, -1")
    A(f"  s_lshl_b32 s{sTMP}, s{sHEAD}, 2")
    A(f"  s_add_u32 s{sDSRD}, s{sDBG}, s{sTMP}\n  s_addc_u32 s{sDSRD+1}, s{sDBG+1}, 0")
    A(f"  s_mov_b32 s{sDSRD+2}, 4\n  s_mov_b32 s{sDSRD+3}, 0x20000")
    ws_srd()
    A(f"  s_cmp_eq_u32 s{sQTR}, 0\n  s_cbranch_scc1 L_hq")
    for r in range(4): A(f"  v_mov_b32 v{C+r}, -1")
    A(f"  v_lshlrev_b32 v{T}, 9, v{vLANE}\n  v_and_b32 v{T}, 0xc00, v{T}")
    A(f"  v_and_b32 v{T+1}, 1, v{vLANE}\n  v_lshl_add_u32 v{T}, v{T+1}, 8, v{T}\n  v_add_u32 v{T}, 0x1000, v{T}")
    for p in range(4):
        A(f"  buffer_store_dwordx4 {vr(C,4)}, v{vTMP}, {sr(sWSRD,4)}, s{sSLOT} offen offset:{p*1024} {hf}")
    A("  s_mov_b64 exec, 0xff")
    A(f"  buffer_store_dwordx4 {vr(C,4)}, v{T}, {sr(sWSRD,4)}, s{sSLOT} offen {hf}")
    A(f"  v_mov_b32 v{T+2}, 1\n  s_mov_b64 exec, 1\n  s_waitcnt vmcnt(0)")
    A(f"  buffer_atomic_add v{T+2}, off, {sr(sDSRD,4)}, 0 sc1")
    A("  s_endpgm")
    A("L_hq:")
    A(f"  v_add_u32 v{T}, v{T}, v{T+3}")
    for j in range(4):
        A(f"  buffer_load_dwordx4 {vr(OM1+j*4,4)}, v{T}, {sr(sXSRD,4)}, 0 offen offset:{j*64}")
    A(f"  s_mov_b32 s{sTMP+2}, s{sQ}\n  s_mov_b32 s{sTMP+3}, s{sQ+1}\n  s_movk_i32 s{sTMP+4}, 0x4000\n  s_mov_b32 s{sTMP+5}, 0x20000")
    A(f"  s_lshl_b32 s{sTMP}, s{sHEAD}, 8")
    A(f"  v_add_u32 v{T+3}, s{sTMP}, v{T+3}")
    for j in range(4):
        A(f"  buffer_load_dwordx4 {vr(XV+j*4,4)}, v{T+3}, {sr(sTMP+2,4)}, 0 offen offset:{j*64}")
    consts()
    A("  s_waitcnt vmcnt(0)")
    if touch:
        A(f"  buffer_load_dword v{RING}, off, {sr(sWSRD,4)}, 0 {hf}")
        A(f"  v_mov_b32 v{RING+2}, 0")
        A(f"  global_load_dword v{RING+1}, v{RING+2}, {sr(sOUT,2)} sc1")
    for j in range(4):
        scale_unpack(XV+j*4); scale_rest(XV+j*4)
    A("  s_nop 1")
    for j in range(4):
        c0 = "0" if j == 0 else vr(D,4); c1 = "0" if j == 0 else vr(G0,4)
        A(f"  v_mfma_f32_16x16x32_bf16 {vr(D,4)}, {vr(OM1+j*4,4)}, {vr(XV+j*4,4)}, {c0}")
        A(f"  v_mfma_f32_16x16x32_bf16 {vr(G0,4)}, {vr(XV+j*4,4)}, {vr(XV+j*4,4)}, {c1}")
    A("  s_nop 7")
    pack4(D, T, T+1); unpack4(C, T, T+1)
    A(f"  v_cvt_pk_bf16_f32 v{T+2}, v{G0}, v{G0}")
    A(f"  v_and_b32 v{T+2}, s{sHI}, v{T+2}")
    for r in range(4): A(f"  v_fma_f32 v{C+r}, v{T+2}, -0.5, v{C+r}")
    phi_tail(); unpack4(PQ, T, T+1)
    A(f"  ds_write_b128 v{vTMP}, {vr(PQ,4)} offset:{LDS_PQ}")
    A(f"  s_mov_b32 s{sTMP+6}, 0x40000")
    A("L_arr:")
    A(f"  buffer_load_dword v{T}, off, {sr(sDSRD,4)}, 0 sc1")
    A("  s_waitcnt vmcnt(0) lgkmcnt(0)")
    A(f"  v_readfirstlane_b32 s{sTMP+7}, v{T}")
    A(f"  s_sub_u32 s{sTMP+6}, s{sTMP+6}, 1\n  s_cbranch_scc1 L_hend")
    A(f"  s_cmp_eq_u32 s{sTMP+7}, 3\n  s_cbranch_scc0 L_arr")
    A("L_hend:\n  s_endpgm")
    A(f""".section .rodata,"a"
.p2align 6
.amdhsa_kernel {NAME}
  .amdhsa_next_free_vgpr {NVGPR}
  .amdhsa_next_free_sgpr 96
  .amdhsa_accum_offset {NVGPR}
  .amdhsa_group_segment_fixed_size 0
  .amdhsa_kernarg_size 56
  .amdhsa_user_sgpr_count 2
  .amdhsa_user_sgpr_kernarg_segment_ptr 1
  .amdhsa_system_sgpr_workgroup_id_x 1
  .amdhsa_float_denorm_mode_32 3
.end_amdhsa_kernel""")
    return "\n".join(L) + "\n"

if __name__ == "__main__":
    if len(sys.argv) == 2:
        cfgs = eval(open(sys.argv[1]).read())
        for n, c in cfgs.items():
            open(f"{n}.s", "w").write(gen(**c))
        print(" ".join(f"{n}.s" for n in cfgs))
    else:
        kw = eval("dict(" + (sys.argv[2] if len(sys.argv) > 2 else "") + ")")
        open(sys.argv[1], "w").write(gen(**kw))
```

```python
import sys

NAME = "standalone__linear_kernel_rfa__decode_kernel"
HDR = """; Kernarg layout for this problem (56 bytes, ptrs only, base s[0:1]):
"""

vO, vA, vX, vTMP = 0, 1, 2, 3
D, G0, G1, C, PA = 4, 8, 12, 16, 20
XP, SEL, ONES = 24, 26, 28
T = 32
ACCZ, PQ, ACC = 40, 44, 48
OM0, OM1 = 80, 96
XV = 112
XK = 144
DT = 160
KS = 176
ID = 184
vC, vL = 186, 187
RING = 188
vZW, vZR, vPROG = 252, 253, 254
NVGPR = 256
sWG, sWAVE = 2, 3
sHEAD, sQTR = 4, 5
sTAG = 6
sKSRD, sVSRD, sWSRD, sXSRD = 8, 12, 16, 20
sSCALE, sLOG2E, sISM, sEPS = 24, 26, 28, 30
sHI, sPLO, sPHI, sT1 = 32, 33, 34, 35
sMD = 36
sMLO = 44
sCNT, sSLOT = 46, 47
sQ, sKP, sVP, sOM, sOUT, sDBG, sWS = 48, 50, 52, 54, 56, 58, 60
sTMP = 62
sS1 = 68
sPSRD = 72
sMQ = 94
LDS_Z, LDS_PQ, LDS_PQZ = 16384, 20480, 21504
EOFF, POFF = 0x1f00, 0x1e00
sXCC, sME = 7, 71

def vr(a, n): return f"v[{a}:{a+n-1}]"
def sr(a, n): return f"s[{a}:{a+n-1}]"

def gen(stamps=False, lds=81920 + 512, flags="nt", order="head", hf="sc1", at="loopend", Dp=5, abl=(),
        noepi=False, prog=False, warm=True, tail=None, ep=13, lastd=5, peel=3, bar=(), bar1=True, scheme="S", nopoll1=False,
        nohelper=False, noE=False, hexit=None, Elate=False, omafter=False, dual=None, lf=None, probe=False, pn=11):
    if lf is None: lf = hf
    L = []
    def A(s):
        for x in s.split("\n"): L.append(x)
    def stamp(name):
        if stamps and at == name: A("  s_memrealtime s[82:83]")
    def tstamp(name):
        if tail == name: A("  s_memrealtime s[78:79]")
    sMQ = sQ
    NWG = 256; NT = 16
    SIZE, T1OFF, STEP = 2097152, 65536, 131072
    A(HDR + f"; @launch grid=({NWG},1,1) block=(320,1,1) lds={lds}")
    A('.amdgcn_target "amdgcn-amd-amdhsa--gfx950"\n.text')
    A(f".globl {NAME}\n.p2align 8\n.type {NAME},@function\n{NAME}:")
    A(f"  s_cmp_ge_u32 s{sWG}, {NWG}\n  s_cbranch_scc1 L_done")
    if stamps: A("  s_memrealtime s[80:81]\n  s_memtime s[90:91]")
    A(f"  s_load_dwordx8 {sr(sQ,8)}, s[0:1], 0")
    A(f"  s_load_dwordx4 {sr(sOUT,4)}, s[0:1], 32")
    A(f"  s_load_dwordx2 {sr(sWS,2)}, s[0:1], 48")
    A(f"  v_lshrrev_b32 v{vTMP}, 6, v0")
    A(f"  v_and_b32 v0, 63, v0")
    A(f"  v_readfirstlane_b32 s{sWAVE}, v{vTMP}")
    if order == "xhead":
        A(f"  s_lshr_b32 s{sHEAD}, s{sWG}, 5\n  s_lshl_b32 s{sHEAD}, s{sHEAD}, 3\n  s_and_b32 s{sTMP}, s{sWG}, 7\n  s_add_u32 s{sHEAD}, s{sHEAD}, s{sTMP}")
        A(f"  s_bfe_u32 s{sQTR}, s{sWG}, 0x20003")
    else:
        A(f"  s_lshr_b32 s{sHEAD}, s{sWG}, 2\n  s_and_b32 s{sQTR}, s{sWG}, 3")
    A(f"  v_lshlrev_b32 v{vTMP}, 4, v0")
    A(f"  v_and_b32 v{T+3}, 48, v0\n  v_lshlrev_b32 v{T+3}, 2, v{T+3}")
    A(f"  v_and_b32 v{T}, 7, v0\n  v_lshl_add_u32 v{T}, v{T}, 8, v{T+3}")
    A(f"  s_lshl_b32 s{sTMP}, s{sQTR}, 2\n  s_add_u32 s{sTMP}, s{sTMP}, s{sWAVE}\n  s_lshl_b32 s{sTMP}, s{sTMP}, 12")
    A(f"  v_add_u32 v{vA}, s{sTMP}, v{vTMP}")
    A(f"  s_mov_b32 s{sT1}, {T1OFF}")
    A(f"  s_lshl_b32 s{sTMP}, s{sHEAD}, 21\n  s_lshr_b32 s{sTMP+1}, s{sHEAD}, 11")
    A(f"  s_mov_b32 s{sKSRD+2}, {SIZE}\n  s_mov_b32 s{sKSRD+3}, 0x20000")
    A(f"  s_mov_b32 s{sVSRD+2}, {SIZE}\n  s_mov_b32 s{sVSRD+3}, 0x20000")
    A(f"  s_movk_i32 s{sXSRD+2}, 0x800\n  s_mov_b32 s{sXSRD+3}, 0x20000")
    A("  s_waitcnt lgkmcnt(0)")
    A(f"  s_mov_b32 s{sXSRD}, s{sOM}\n  s_mov_b32 s{sXSRD+1}, s{sOM+1}")
    W = XV
    for r in range(4):
        A(f"  buffer_load_dwordx4 {vr(W+r*4,4)}, v{T}, {sr(sXSRD,4)}, 0 offen offset:{r*16}")
    A(f"  s_cmp_eq_u32 s{sWAVE}, 4\n  s_cbranch_scc1 L_helper")
    A(f"  s_add_u32 s{sKSRD}, s{sKP}, s{sTMP}\n  s_addc_u32 s{sKSRD+1}, s{sKP+1}, s{sTMP+1}")
    A(f"  s_add_u32 s{sVSRD}, s{sVP}, s{sTMP}\n  s_addc_u32 s{sVSRD+1}, s{sVP+1}, s{sTMP+1}")
    stamp("kernarg")

    def issue(i):
        i %= 16
        piece, r = i >> 2, i & 3
        srd = sVSRD if piece & 1 else sKSRD
        so = f"s{sT1}" if piece >> 1 else "0"
        A(f"  buffer_load_dwordx4 {vr(RING+i*4,4)}, v{vA}, {sr(srd,4)}, {so} offen offset:{r*1024} {flags}")
        if i == 15: A(f"  v_add_u32 v{vA}, {hex(STEP)}, v{vA}")
    def consts():
        for p, val in ((sSCALE, 0x3e9837f0), (sLOG2E, 0x3fb8aa3c), (sISM, 0x3eb504f3), (sEPS, 0x358637bd)):
            A(f"  s_mov_b32 s{p}, {hex(val)}\n  s_mov_b32 s{p+1}, {hex(val)}")
        A(f"  s_mov_b32 s{sHI}, 0xffff0000\n  s_mov_b32 s{sPLO}, 0x05040100\n  s_mov_b32 s{sPHI}, 0x07060302")
        for k, val in enumerate((0x22222222, 0x44444444, 0x88888888)):
            A(f"  s_mov_b32 s{sMQ+2*k}, {hex(val)}\n  s_mov_b32 s{sMQ+2*k+1}, {hex(val)}")
    def ws_base():
        A(f"  s_lshl_b32 s{sTMP}, s{sHEAD}, 15")
        A(f"  s_add_u32 s{sWSRD}, s{sWS}, s{sTMP}\n  s_addc_u32 s{sWSRD+1}, s{sWS+1}, 0")
    def pair_perms(n):
        piece, pp = n >> 2, (n & 3) >> 1
        a, b = RING + (n - 1) * 4, RING + n * 4
        for q in range(4):
            for h in range(2):
                e = 2 * q + h
                dst = XV + 4 * e + 2 * (piece >> 1) + pp if piece & 1 else XK + 2 * e + pp
                A(f"  v_perm_b32 v{dst}, v{b+q}, v{a+q}, s{sPHI if h else sPLO}")
    def opperm(dst, src):
        for q in range(4):
            for h in range(2):
                for rr in range(2):
                    A(f"  v_perm_b32 v{dst+q*4+h*2+rr}, v{src+(2*rr+1)*4+q}, v{src+(2*rr)*4+q}, s{sPHI if h else sPLO}")
    def pick(dst, src):
        A(f"  v_cndmask_b32 v{dst}, v{src}, v{src+1}, {sr(sMQ,2)}")
        A(f"  v_cndmask_b32 v{dst}, v{dst}, v{src+2}, {sr(sMQ+2,2)}")
        A(f"  v_cndmask_b32 v{dst}, v{dst}, v{src+3}, {sr(sMQ+4,2)}")

    for i in range(Dp): issue(i)
    stamp("issued")
    ws_base()
    if noE: A(f"  s_mov_b32 s{sTAG}, 0")
    elif not Elate: A(f"  s_load_dword s{sTAG}, {sr(sWSRD,2)}, {hex(EOFF)}")
    A(f"  s_mov_b32 s{sWSRD+2}, 0x8000\n  s_mov_b32 s{sWSRD+3}, 0x20000")
    A(f"  s_lshl_b32 s{sSLOT}, s{sQTR}, 13")
    if scheme == "F":
        A(f"  s_mov_b32 s{sPSRD}, s{sWSRD}\n  s_mov_b32 s{sPSRD+1}, s{sWSRD+1}\n  s_mov_b32 s{sPSRD+3}, 0x20000")
        A(f"  s_cmp_eq_u32 s{sQTR}, 0\n  s_cselect_b32 s{sPSRD+2}, 0x8000, 0")
        PS = sPSRD
    else:
        PS = sWSRD
    consts()
    A(f"  s_mov_b32 s{sMLO}, 0x00ff00ff\n  s_mov_b32 s{sMLO+1}, 0x00ff00ff")
    for r in range(4):
        m = sum(1 << (20 * g + r) for g in range(4))
        A(f"  s_mov_b32 s{sMD+2*r}, {hex(m & 0xffffffff)}\n  s_mov_b32 s{sMD+2*r+1}, {hex(m >> 32)}")
    A(f"  v_mov_b32 v{XP+1}, 0\n  v_mov_b32 v{SEL+1}, 0")
    A(f"  v_mov_b32 v{T}, 0xbf00\n  v_mov_b32 v{T+1}, 0xbf000000")
    A(f"  v_cndmask_b32 v{SEL}, v{T+1}, v{T}, {sr(sMLO,2)}")
    A(f"  v_mov_b32 v{T}, 0x3f80\n  v_mov_b32 v{T+1}, 0x3f800000")
    for k in range(2):
        A(f"  v_cndmask_b32 v{ID+k}, 0, v{T}, {sr(sMD+4*k,2)}")
        A(f"  v_cndmask_b32 v{ID+k}, v{ID+k}, v{T+1}, {sr(sMD+4*k+2,2)}")
    for r in range(4): A(f"  v_mov_b32 v{ONES+r}, 0x3f803f80")
    for r in range(4): A(f"  v_mov_b32 v{ACCZ+r}, 0")
    for r in range(32): A(f"  v_mov_b32 v{ACC+r}, 0")
    for w in range(1, 4): A(f"  s_xor_b32 s{sS1+w-1}, s{sSLOT}, {hex(w*8192)}")
    if probe: A(f"  s_getreg_b32 s{sXCC}, hwreg(HW_REG_XCC_ID, 0, 4)\n  s_movk_i32 s{sME}, {hex(POFF)}")
    A(f"  s_lshl_b32 s{sTMP}, s{sWAVE}, 10")
    A(f"  v_add_u32 v{vX}, s{sTMP}, v{vTMP}")
    A(f"  v_lshrrev_b32 v{vZW}, 2, v{vX}")
    A(f"  v_lshrrev_b32 v{vC}, 1, v{vX}\n  v_add_u32 v{vC}, 0x1000, v{vC}")
    A(f"  v_lshrrev_b32 v{vZR}, 2, v{vTMP}\n  v_add_u32 v{vZR}, {LDS_Z}, v{vZR}")
    A(f"  s_lshl_b32 s{sTMP}, s{sWAVE}, 12")
    A(f"  v_add_u32 v{vL}, s{sTMP}, v{vTMP}")
    A(f"  s_mov_b32 s{sXSRD}, s{sOUT}\n  s_mov_b32 s{sXSRD+1}, s{sOUT+1}\n  s_movk_i32 s{sXSRD+2}, 0x4000\n  s_mov_b32 s{sXSRD+3}, 0x20000")
    A(f"  v_and_b32 v{T+4}, 0xf0, v{vTMP}")
    A(f"  v_lshrrev_b32 v{T+6}, 9, v{vTMP}")
    A(f"  v_lshl_add_u32 v{T+4}, v{T+6}, 3, v{T+4}")
    A(f"  s_lshl_b32 s{sTMP}, s{sHEAD}, 8\n  s_lshl_b32 s{sTMP+1}, s{sWAVE}, 1\n  s_add_u32 s{sTMP}, s{sTMP}, s{sTMP+1}")
    A(f"  v_add_u32 v{vO}, s{sTMP}, v{T+4}")

    def scale_unpack(a):
        for i in range(4):
            A(f"  v_lshlrev_b32 v{T+2*i}, 16, v{a+i}\n  v_and_b32 v{T+2*i+1}, s{sHI}, v{a+i}")
    def scale_rest(a):
        for i in range(4): A(f"  v_pk_mul_f32 {vr(T+2*i,2)}, {vr(T+2*i,2)}, {sr(sSCALE,2)}")
        for i in range(4): A(f"  v_cvt_pk_bf16_f32 v{a+i}, v{T+2*i}, v{T+2*i+1}")
    def unpack4(dst, p0, p1):
        A(f"  v_lshlrev_b32 v{dst}, 16, v{p0}\n  v_and_b32 v{dst+1}, s{sHI}, v{p0}")
        A(f"  v_lshlrev_b32 v{dst+2}, 16, v{p1}\n  v_and_b32 v{dst+3}, s{sHI}, v{p1}")
    def pack4(src, p0, p1):
        A(f"  v_cvt_pk_bf16_f32 v{p0}, v{src}, v{src+1}\n  v_cvt_pk_bf16_f32 v{p1}, v{src+2}, v{src+3}")
    def phi_tail():
        pack4(C, T, T+1); unpack4(C, T, T+1)
        A(f"  v_pk_mul_f32 {vr(C,2)}, {vr(C,2)}, {sr(sLOG2E,2)}\n  v_pk_mul_f32 {vr(C+2,2)}, {vr(C+2,2)}, {sr(sLOG2E,2)}")
        for r in range(4): A(f"  v_exp_f32 v{C+r}, v{C+r}")
        A("  s_nop 0")
        pack4(C, T, T+1); unpack4(C, T, T+1)
        A(f"  v_pk_mul_f32 {vr(C,2)}, {vr(C,2)}, {sr(sISM,2)}\n  v_pk_mul_f32 {vr(C+2,2)}, {vr(C+2,2)}, {sr(sISM,2)}")
        pack4(C, T, T+1); unpack4(C, T, T+1)
        A(f"  v_pk_add_f32 {vr(C,2)}, {vr(C,2)}, {sr(sEPS,2)}\n  v_pk_add_f32 {vr(C+2,2)}, {vr(C+2,2)}, {sr(sEPS,2)}")
        pack4(C, T, T+1)
    def poll_loads(P):
        for w in range(3):
            A(f"  buffer_load_dwordx4 {vr(P+w*8,4)}, v{vX}, {sr(PS,4)}, s{sS1+w} offen {lf}")
            A(f"  buffer_load_dwordx2 {vr(P+w*8+4,2)}, v{vC}, {sr(PS,4)}, s{sS1+w} offen {lf}")

    for n in range(peel):
        A(f"  s_waitcnt vmcnt({Dp-1})")
        if n == 0: stamp("firstdata")
        issue(n + Dp)
        if n & 1: pair_perms(n)
        if n == 0: opperm(OM1, W)
        if n == 1:
            for r in range(16): A(f"  v_cndmask_b32 v{OM0+r}, 0, v{OM1+r}, {sr(sMLO,2)}")
        if n == 2:
            for r in range(16): A(f"  v_cndmask_b32 v{OM1+r}, v{OM1+r}, 0, {sr(sMLO,2)}")
    if bar1: A("  s_barrier")
    A(f"  s_mov_b32 s{sCNT}, {NT - 1}\n  s_cmp_eq_u32 s{sCNT}, 0")
    if Elate and not noE: A(f"  s_load_dword s{sTAG}, {sr(sWSRD,2)}, {hex(EOFF)}")
    stamp("loopstart")
    A("  s_branch L_join")
    P1, P2 = DT, XV
    np1 = 0 if nopoll1 else 6
    ool_at = len(L)
    A("  .p2align 3\nL_loop:")
    loop_start = len(L)
    A(f"  s_sub_u32 s{sCNT}, s{sCNT}, 1")
    A(f"  s_cmp_eq_u32 s{sCNT}, 0")
    ool = []
    last_issued = [Dp - 1]
    def service(n):
        if n == peel: A("L_join:")
        special = lastd != Dp or n + Dp >= 16
        if special: A(f"  s_cbranch_scc1 L_last{n}")
        A(f"  s_waitcnt vmcnt({Dp-1})")
        if n in bar: A("  s_barrier")
        issue(n + Dp)
        if special:
            A(f"L_back{n}:")
            save = len(L)
            A(f"L_last{n}:")
            if lastd == Dp: last_issued[0] = 15
            A(f"  s_waitcnt vmcnt({last_issued[0] - n + (np1 if n > ep else 0) + (1 if probe and n > pn else 0)})")
            if n in bar: A("  s_barrier")
            while last_issued[0] < min(15, n + lastd):
                last_issued[0] += 1; issue(last_issued[0])
            if probe and n == pn:
                assert last_issued[0] == 15
                A(f"  buffer_load_dwordx4 {vr(T+4,4)}, off, {sr(sWSRD,4)}, s{sME} sc1")
            if n == ep and np1: poll_loads(P1)
            A(f"  s_branch L_back{n}")
            ool.extend(L[save:]); del L[save:]
        if n & 1: pair_perms(n)
    def steps(t, j0):
        g = G1 if t else G0
        om = OM1 if t else OM0
        for k in range(4):
            A(f"  v_mfma_f32_16x16x16_bf16 {vr(DT+4*k,4)}, {vr(XK+2*(2*j0+k),2)}, {vr(ID,2)}, 0")
        A("  s_nop 5")
        def mul(k):
            for r in (0, 2): A(f"  v_pk_mul_f32 {vr(DT+4*k+r,2)}, {vr(DT+4*k+r,2)}, {sr(sSCALE,2)}")
        def cvt(s):
            for k in range(2):
                for r in range(2):
                    A(f"  v_cvt_pk_bf16_f32 v{KS+4*s+2*k+r}, v{DT+4*(2*s+k)+2*r}, v{DT+4*(2*s+k)+2*r+1}")
        def mf(s):
            j = j0 + s
            A(f"  v_mfma_f32_16x16x32_bf16 {vr(D,4)}, {vr(KS+4*s,4)}, {vr(om+4*j,4)}, {'0' if (t, j) == (0, 0) else vr(D,4)}")
            A(f"  v_mfma_f32_16x16x32_bf16 {vr(g,4)}, {vr(KS+4*s,4)}, {vr(KS+4*s,4)}, {'0' if j == 0 else vr(g,4)}")
        mul(0); mul(1); cvt(0); mul(2); mul(3); mf(0); cvt(1)
        A("  s_nop 1")
        mf(1)
    def phi1():
        for r in range(4): A(f"  v_cvt_pk_bf16_f32 v{G0+r}, v{G0+r}, v{G1+r}")
        pack4(D, T, T+1)
        A(f"  v_cndmask_b32 v{XP}, 0, v{G0}, {sr(sMD,2)}")
        for r in range(1, 4): A(f"  v_cndmask_b32 v{XP}, v{XP}, v{G0+r}, {sr(sMD+2*r,2)}")
        unpack4(C, T, T+1)
        A("  s_nop 1")
        A(f"  v_mfma_f32_16x16x16_bf16 {vr(C,4)}, {vr(XP,2)}, {vr(SEL,2)}, {vr(C,4)}")
    def phi2():
        A("  s_nop 5")
        phi_tail()
        A(f"  v_cndmask_b32 v{PA}, 0, v{T}, {sr(sMLO,2)}\n  v_cndmask_b32 v{PA+1}, 0, v{T+1}, {sr(sMLO,2)}")
        A(f"  v_cndmask_b32 v{PA+2}, v{T}, 0, {sr(sMLO,2)}\n  v_cndmask_b32 v{PA+3}, v{T+1}, 0, {sr(sMLO,2)}")
    def pvall():
        A(f"  v_mfma_f32_16x16x32_bf16 {vr(ACCZ,4)}, {vr(PA,4)}, {vr(ONES,4)}, {vr(ACCZ,4)}")
        A("  s_nop 0")
        for e in (0, 4, 1, 5, 2, 6, 3, 7):
            A(f"  v_mfma_f32_16x16x32_bf16 {vr(ACC+e*4,4)}, {vr(PA,4)}, {vr(XV+e*4,4)}, {vr(ACC+e*4,4)}")
    chunks = {3: lambda: (A("  s_nop 1"), steps(0, 0)), 4: lambda: steps(0, 2),
              11: lambda: (A("  s_nop 1"), steps(1, 0)), 12: lambda: steps(1, 2),
              13: phi1, 14: phi2, 15: pvall}
    for n in range(16):
        service(n)
        if n in chunks: chunks[n]()
    if prog:
        A(f"  s_memrealtime s[88:89]\n  s_mov_b32 m0, s{sCNT}\n  s_waitcnt lgkmcnt(0)\n  v_writelane_b32 v{vPROG}, s88, m0")
    A("  s_cbranch_scc0 L_loop")
    if abl:
        body = L[loop_start:]; del L[loop_start:]
        for x in body:
            t = x.strip()
            if "valu" in abl and t.startswith("v_") and not t.startswith(("v_mfma", "v_add_u32", "v_writelane", "v_readfirst")): continue
            if "mfma" in abl and t.startswith("v_mfma"): continue
            L.append(x)
    L[ool_at:ool_at] = ool

    stamp("loopend")
    if tail: A("  s_memrealtime s[76:77]\n  s_memrealtime s[78:79]")
    if noepi: A("  s_waitcnt vmcnt(0)\n  s_branch L_fin")
    R = OM0
    CK, RZ = OM1, OM1 + 1
    PZ = OM1 + 6
    pick(T, ACCZ)
    A(f"  v_mov_b32 v{T+1}, v{T}")
    A("  s_nop 1")
    A(f"  v_permlane32_swap_b32 v{T}, v{T+1}")
    A(f"  v_add_f32 v{T}, v{T}, v{T+1}")
    A(f"  ds_write_b32 v{vZW}, v{T} offset:{LDS_Z}")
    for p in range(4):
        for r in range(4): A(f"  v_permlane32_swap_b32 v{ACC+p*4+r}, v{ACC+(p+4)*4+r}")
        for r in range(0, 4, 2): A(f"  v_pk_add_f32 {vr(ACC+p*4+r,2)}, {vr(ACC+p*4+r,2)}, {vr(ACC+(p+4)*4+r,2)}")
        A(f"  ds_write_b128 v{vL}, {vr(ACC+p*4,4)} offset:{p*1024}")
    A("  s_waitcnt lgkmcnt(0)")
    A(f"  s_add_u32 s{sTAG}, s{sTAG}, 0x9e3779b9")
    if probe: A(f"  s_add_u32 s{sME}, s{sTAG}, s{sXCC}")
    tstamp("prebar")
    A("  s_barrier")
    tstamp("postbar")
    for w in range(4): A(f"  ds_read_b128 {vr(R+w*4,4)}, v{vX} offset:{w*4096}")
    A(f"  ds_read2_b32 {vr(T,2)}, v{vZR} offset0:0 offset1:64")
    A(f"  ds_read2_b32 {vr(T+2,2)}, v{vZR} offset0:128 offset1:192")
    A(f"  ds_read_b128 {vr(PQ,4)}, v{vTMP} offset:{LDS_PQ}")
    A(f"  ds_read_b32 v{PZ}, v{vZR} offset:{LDS_PQZ - LDS_Z}")
    poll_loads(P2)
    if probe:
        A(f"  s_waitcnt vmcnt({6 + np1})")
        A(f"  v_bitop3_b32 v{T+4}, v{T+4}, v{T+5}, s{sME} bitop3:0x7e")
        A(f"  v_bitop3_b32 v{T+6}, v{T+6}, v{T+7}, s{sME} bitop3:0x7e")
        A(f"  v_or_b32 v{T+4}, v{T+4}, v{T+6}")
        A(f"  v_cmp_ne_u32 vcc, 0, v{T+4}")
    A("  s_waitcnt lgkmcnt(2)")
    for r in (0, 2): A(f"  v_pk_add_f32 {vr(R+r,2)}, {vr(R+r,2)}, {vr(R+4+r,2)}")
    for r in (0, 2): A(f"  v_pk_add_f32 {vr(R+8+r,2)}, {vr(R+8+r,2)}, {vr(R+12+r,2)}")
    A(f"  v_pk_add_f32 {vr(T,2)}, {vr(T,2)}, {vr(T+2,2)}")
    for r in (0, 2): A(f"  v_pk_add_f32 {vr(R+r,2)}, {vr(R+r,2)}, {vr(R+8+r,2)}")
    A(f"  v_add_f32 v{RZ}, v{T}, v{T+1}")
    def publish(fl):
        A(f"  buffer_store_dwordx4 {vr(R,4)}, v{vX}, {sr(sWSRD,4)}, s{sSLOT} offen {fl}")
        A(f"  v_bitop3_b32 v{CK}, v{R}, v{R+1}, s{sTAG} bitop3:0x96")
        A(f"  v_bitop3_b32 v{T}, v{R+2}, v{R+3}, v{RZ} bitop3:0x96")
        A(f"  v_xor_b32 v{CK}, v{CK}, v{T}")
        A(f"  buffer_store_dwordx2 {vr(CK,2)}, v{vC}, {sr(sWSRD,4)}, s{sSLOT} offen {fl}")
    if probe:
        A("  s_cbranch_vccnz L_far")
        publish("")
        A("L_pub:")
    else:
        publish(hf)
    ns = 2
    if dual is not None:
        A(f"  buffer_store_dwordx4 {vr(R,4)}, v{vX}, {sr(sWSRD,4)}, s{sSLOT} offen {dual}")
        A(f"  buffer_store_dwordx2 {vr(CK,2)}, v{vC}, {sr(sWSRD,4)}, s{sSLOT} offen {dual}")
        ns = 4
    tstamp("pub")
    if scheme == "F":
        A(f"  s_cmp_lg_u32 s{sQTR}, 0\n  s_cbranch_scc1 L_fin")
        A(f"  s_mov_b32 s{sTMP+2}, 0x40000")
    def check(P):
        for w in range(3): A(f"  v_bitop3_b32 v{T+w}, v{P+8*w}, v{P+8*w+1}, s{sTAG} bitop3:0x96")
        for w in range(3): A(f"  v_bitop3_b32 v{T+w}, v{P+8*w+2}, v{P+8*w+3}, v{T+w} bitop3:0x96")
        for w in range(3): A(f"  v_bitop3_b32 v{T+w}, v{P+8*w+4}, v{P+8*w+5}, v{T+w} bitop3:0x96")
        A(f"  v_or3_b32 v{T}, v{T}, v{T+1}, v{T+2}")
        A(f"  v_cmp_ne_u32 vcc, 0, v{T}")
        A("  s_nop 1")
    def combine(P):
        for r in (0, 2): A(f"  v_pk_add_f32 {vr(R+r,2)}, {vr(R+r,2)}, {vr(P+r,2)}")
        for r in (0, 2): A(f"  v_pk_add_f32 {vr(P+8+r,2)}, {vr(P+8+r,2)}, {vr(P+16+r,2)}")
        A(f"  v_add_f32 v{RZ}, v{RZ}, v{P+5}\n  v_add_f32 v{P+13}, v{P+13}, v{P+21}")
        for r in (0, 2): A(f"  v_pk_add_f32 {vr(R+r,2)}, {vr(R+r,2)}, {vr(P+8+r,2)}")
        A(f"  v_add_f32 v{RZ}, v{RZ}, v{P+13}")
    if np1:
        A(f"  s_waitcnt vmcnt({6 + ns})")
        check(P1)
        A("  s_cbranch_vccnz L_try2")
        tstamp("got")
        combine(P1)
    else:
        A("  s_branch L_try2")
    A("L_final:")
    A("  s_waitcnt lgkmcnt(0)")
    pack4(R, T, T+1)
    A(f"  v_cvt_pk_bf16_f32 v{T+2}, v{RZ}, v{RZ}")
    unpack4(R, T, T+1)
    A(f"  v_and_b32 v{RZ}, s{sHI}, v{T+2}")
    A(f"  v_mul_f32 v{RZ}, v{RZ}, v{PZ}")
    A(f"  v_mul_f32 v{R}, v{R}, v{PQ}\n  v_fmac_f32 v{R}, v{R+1}, v{PQ+1}")
    A(f"  v_add_f32_dpp v{RZ}, v{RZ}, v{RZ} quad_perm:[1,0,3,2] row_mask:0xf bank_mask:0xf")
    A(f"  v_fmac_f32 v{R}, v{R+2}, v{PQ+2}\n  v_fmac_f32 v{R}, v{R+3}, v{PQ+3}")
    A(f"  v_add_f32_dpp v{RZ}, v{RZ}, v{RZ} quad_perm:[2,3,0,1] row_mask:0xf bank_mask:0xf")
    A(f"  v_mov_b32 v{R+1}, v{R}\n  v_mov_b32 v{RZ+1}, v{RZ}\n  s_nop 1")
    A(f"  v_permlane16_swap_b32 v{R}, v{R+1}\n  v_permlane16_swap_b32 v{RZ}, v{RZ+1}")
    A(f"  v_add_f32 v{R}, v{R}, v{R+1}\n  v_add_f32 v{RZ}, v{RZ}, v{RZ+1}")
    A(f"  v_cvt_pk_bf16_f32 v{T}, v{R}, v{RZ}")
    A(f"  v_lshlrev_b32 v{R}, 16, v{T}\n  v_and_b32 v{R+1}, s{sHI}, v{T}")
    A(f"  v_add_f32 v{R+1}, s{sEPS}, v{R+1}")
    A(f"  v_cvt_pk_bf16_f32 v{T}, v{R+1}, v{R+1}")
    A(f"  v_and_b32 v{R+1}, s{sHI}, v{T}")
    n, d = R, R+1; a, b_, c, e, f = R+2, R+3, R+4, R+5, R+6
    A(f"""  v_div_scale_f32 v{a}, {sr(sTMP,2)}, v{d}, v{d}, v{n}
  v_div_scale_f32 v{b_}, vcc, v{n}, v{d}, v{n}
  v_rcp_f32 v{c}, v{a}
  v_mov_b32 v{T+1}, s{sTAG}
  v_fma_f32 v{e}, -v{a}, v{c}, 1.0
  v_fmac_f32 v{c}, v{e}, v{c}
  v_mul_f32 v{e}, v{b_}, v{c}
  v_fma_f32 v{f}, -v{a}, v{e}, v{b_}
  v_fmac_f32 v{e}, v{f}, v{c}
  v_fma_f32 v{a}, -v{a}, v{e}, v{b_}
  v_div_fmas_f32 v{a}, v{a}, v{c}, v{e}
  v_div_fixup_f32 v{a}, v{a}, v{d}, v{n}
  v_cvt_pk_bf16_f32 v{a}, v{a}, v{a}""")
    A("  s_mov_b32 exec_lo, 0xffff\n  s_mov_b32 exec_hi, 0xffff")
    A(f"  buffer_store_short v{a}, v{vO}, {sr(sXSRD,4)}, 0 offen")
    A(f"  s_mov_b64 exec, 1\n  s_movk_i32 s{sTMP+2}, {hex(EOFF)}")
    A(f"  buffer_store_dword v{T+1}, off, {sr(sWSRD,4)}, s{sTMP+2}")
    tstamp("outissue")
    if stamps: A("  s_branch L_fin")
    else: A("  s_endpgm")
    A(f"L_try2:\n  s_waitcnt vmcnt({ns})")
    if scheme == "F": A("L_again:")
    check(P2)
    A("  s_cbranch_vccnz L_try3")
    A("L_use2:")
    tstamp("got")
    combine(P2)
    A("  s_branch L_final")
    if scheme == "F":
        A("L_try3:")
        poll_loads(P2)
        A(f"  s_sub_u32 s{sTMP+2}, s{sTMP+2}, 1\n  s_waitcnt vmcnt(0)\n  s_cbranch_scc0 L_again\n  s_branch L_use2")
    else:
        A("L_try3:\n  s_waitcnt vmcnt(0)")
        poll_loads(P2)
        A("  s_waitcnt vmcnt(0)")
        check(P2)
        A("  s_cbranch_vccz L_use2")
    if probe:
        A("  s_branch L_fin\nL_far:")
        publish(hf)
        A("  s_branch L_pub")
    A("L_fin:")
    if prog:
        A("  s_mov_b64 exec, -1")
        A(f"  s_lshl_b32 s87, s{sWG}, 2\n  s_add_u32 s87, s87, s{sWAVE}\n  s_lshl_b32 s87, s87, 8\n  s_add_u32 s87, s87, 0x2000000")
        A(f"  v_lshrrev_b32 v1, 2, v{vTMP}\n  v_add_u32 v1, s87, v1\n  global_store_dword v1, v{vPROG}, {sr(sWS,2)}")
    if stamps:
        A("  s_mov_b64 exec, 1\n  s_waitcnt vmcnt(0)\n  s_memrealtime s[84:85]\n  s_memtime s[92:93]\n  s_getreg_b32 s86, hwreg(HW_REG_XCC_ID)\n  s_waitcnt lgkmcnt(0)")
        A("  s_sub_u32 s92, s92, s90\n  s_lshl_b32 s92, s92, 4\n  s_and_b32 s86, s86, 15\n  s_or_b32 s86, s86, s92")
        A(f"  s_lshl_b32 s87, s{sWG}, 2\n  s_add_u32 s87, s87, s{sWAVE}\n  s_lshl_b32 s87, s87, 4\n  s_add_u32 s87, s87, 0x1000000")
        A(f"  v_mov_b32 v4, s80\n  v_mov_b32 v5, s86\n  v_mov_b32 v6, s84\n  v_mov_b32 v7, s82\n  v_mov_b32 v1, s87")
        A(f"  global_store_dwordx4 v1, v[4:7], {sr(sWS,2)}")
        if tail:
            A(f"  v_mov_b32 v8, s76\n  v_mov_b32 v9, s78\n  v_mov_b32 v10, s84\n  v_mov_b32 v11, s{sQTR}\n  v_add_u32 v1, 0x800000, v1")
            A(f"  global_store_dwordx4 v1, v[8:11], {sr(sWS,2)}\n; TAILS")
    A("L_done:\n  s_endpgm")

    A("L_helper:")
    if nohelper: A("  s_endpgm")
    WQ = XK
    A(f"  s_mov_b32 s{sKSRD}, s{sQ}\n  s_mov_b32 s{sKSRD+1}, s{sQ+1}\n  s_movk_i32 s{sKSRD+2}, 0x4000\n  s_mov_b32 s{sKSRD+3}, 0x20000")
    A(f"  s_lshl_b32 s{sTMP}, s{sHEAD}, 8")
    A(f"  v_add_u32 v{T+3}, s{sTMP}, v{T+3}")
    for r in range(4):
        A(f"  buffer_load_dwordx4 {vr(WQ+r*4,4)}, v{T+3}, {sr(sKSRD,4)}, 0 offen offset:{r*16}")
    if warm:
        ws_base()
        A(f"  v_mov_b32 v{RING}, s{sWSRD}\n  v_mov_b32 v{RING+1}, s{sWSRD+1}")
        A(f"  v_writelane_b32 v{RING}, s{sOUT}, 1\n  v_writelane_b32 v{RING+1}, s{sOUT+1}, 1")
        A(f"  s_mov_b64 exec, 3\n  global_load_dword v{RING+2}, {vr(RING,2)}, off sc1\n  s_mov_b64 exec, -1")
    if probe:
        if not warm: ws_base()
        A(f"  s_load_dword s{sTAG}, {sr(sWSRD,2)}, {hex(EOFF)}")
        A(f"  s_mov_b32 s{sWSRD+2}, 0x8000\n  s_mov_b32 s{sWSRD+3}, 0x20000")
        A(f"  s_getreg_b32 s{sXCC}, hwreg(HW_REG_XCC_ID, 0, 4)")
    if hexit == "wait": A("  s_waitcnt vmcnt(0)")
    if bar1: A("  s_barrier")
    if hexit: A("  s_endpgm")
    consts()
    OMR, QR = ACC, ACC + 16
    A(f"  s_waitcnt vmcnt(0) lgkmcnt(0)")
    if probe:
        A(f"  s_add_u32 s{sTAG}, s{sTAG}, 0x9e3779b9\n  s_add_u32 s{sTAG}, s{sTAG}, s{sXCC}")
        A(f"  s_lshl_b32 s{sTMP}, s{sQTR}, 2\n  s_add_u32 s{sTMP}, s{sTMP}, {hex(POFF)}")
        A(f"  v_mov_b32 v{RING+4}, s{sTAG}\n  s_mov_b64 exec, 1")
        A(f"  buffer_store_dword v{RING+4}, off, {sr(sWSRD,4)}, s{sTMP}\n  s_mov_b64 exec, -1")
    opperm(OMR, W); opperm(QR, WQ)
    for j in range(4):
        scale_unpack(QR+j*4); scale_rest(QR+j*4)
    A("  s_nop 1")
    for j in range(4):
        c0 = "0" if j == 0 else vr(D,4); c1 = "0" if j == 0 else vr(G0,4)
        A(f"  v_mfma_f32_16x16x32_bf16 {vr(D,4)}, {vr(OMR+j*4,4)}, {vr(QR+j*4,4)}, {c0}")
        A(f"  v_mfma_f32_16x16x32_bf16 {vr(G0,4)}, {vr(QR+j*4,4)}, {vr(QR+j*4,4)}, {c1}")
    A("  s_nop 7")
    pack4(D, T, T+1); unpack4(C, T, T+1)
    A(f"  v_cvt_pk_bf16_f32 v{T+2}, v{G0}, v{G0}")
    A(f"  v_and_b32 v{T+2}, s{sHI}, v{T+2}")
    for r in range(4): A(f"  v_fma_f32 v{C+r}, v{T+2}, -0.5, v{C+r}")
    phi_tail(); unpack4(PQ, T, T+1)
    pick(T, PQ)
    A(f"  v_lshrrev_b32 v{T+1}, 2, v{vTMP}")
    A(f"  ds_write_b128 v{vTMP}, {vr(PQ,4)} offset:{LDS_PQ}")
    A(f"  ds_write_b32 v{T+1}, v{T} offset:{LDS_PQZ}")
    A("  s_waitcnt lgkmcnt(0)\n  s_endpgm")
    A(f""".section .rodata,"a"
.p2align 6
.amdhsa_kernel {NAME}
  .amdhsa_next_free_vgpr {NVGPR}
  .amdhsa_next_free_sgpr 96
  .amdhsa_accum_offset {NVGPR}
  .amdhsa_group_segment_fixed_size 0
  .amdhsa_kernarg_size 56
  .amdhsa_user_sgpr_count 2
  .amdhsa_user_sgpr_kernarg_segment_ptr 1
  .amdhsa_system_sgpr_workgroup_id_x 1
  .amdhsa_float_denorm_mode_32 3
.end_amdhsa_kernel""")
    return "\n".join(L) + "\n"

if __name__ == "__main__":
    if len(sys.argv) == 2:
        cfgs = eval(open(sys.argv[1]).read())
        for n, c in cfgs.items():
            open(f"{n}.s", "w").write(gen(**c))
        print(" ".join(f"{n}.s" for n in cfgs))
    else:
        kw = eval("dict(" + (sys.argv[2] if len(sys.argv) > 2 else "") + ")")
        open(sys.argv[1], "w").write(gen(**kw))
```

```python
import sys

NAME = "standalone__linear_kernel_rfa__decode_kernel"
HDR = """; Kernarg layout for this problem (56 bytes, ptrs only, base s[0:1]):
"""

vO, vA, vX, vTMP = 0, 1, 2, 3
D, G0, G1, C, PA = 4, 8, 12, 16, 20
XP, SEL, ONES = 24, 26, 28
T = 32
ACCZ, PQ, ACC = 40, 44, 48
OM0, OM1 = 80, 96
XV = 112
XK = 144
DT = 160
KS = 176
ID = 184
vC, vL = 186, 187
RING = 188
vZW, vZR, vPROG = 252, 253, 254
NVGPR = 256
sWG, sWAVE, sHEAD, sQTR, sTAG, sXCC = 2, 3, 4, 5, 6, 7
sKSRD, sVSRD, sWSRD, sXSRD = 8, 12, 16, 20
sSCALE, sLOG2E, sISM, sEPS = 24, 26, 28, 30
sHI, sPLO, sPHI, sT1 = 32, 33, 34, 35
sMD = 36
sMLO = 44
sCNT, sSLOT = 46, 47
sQ, sKP, sVP, sOM, sOUT, sDBG, sWS = 48, 50, 52, 54, 56, 58, 60
sMQ = 48
sTMP = 62
sDUE, sNB = 66, 67
sS1 = 68
sME, sT2 = 71, 72
sTM = 74
LDS_Z, LDS_PQ, LDS_PQZ = 16384, 20480, 21504
EOFF, POFF = 0x1f00, 0x1e00

def vr(a, n): return f"v[{a}:{a+n-1}]"
def sr(a, n): return f"s[{a}:{a+n-1}]"

def gen(stamps=False, lds=81920 + 512, flags="nt", order="xhead", at="loopend", Dp=5, abl=(), noepi=False, prog=0, tail=None,
        ep=14, DL=6, bar=(0, 8), hb=0, adapt=(6, 218, 30), tsn=8, merge=False):
    L = []
    def A(s):
        for x in s.split("\n"): L.append(x)
    def stamp(name):
        if stamps and at == name: A("  s_memrealtime s[82:83]")
    def tstamp(name):
        if tail == name: A("  s_memrealtime s[78:79]")
    NWG = 256; NT = 16
    SIZE, T1OFF, STEP = 2097152, 65536, 131072
    A(HDR + f"; @launch grid=({NWG},1,1) block=(320,1,1) lds={lds}")
    A('.amdgcn_target "amdgcn-amd-amdhsa--gfx950"\n.text')
    A(f".globl {NAME}\n.p2align 8\n.type {NAME},@function\n{NAME}:")
    A(f"  s_cmp_ge_u32 s{sWG}, {NWG}\n  s_cbranch_scc1 L_done")
    if stamps: A("  s_memrealtime s[80:81]\n  s_memtime s[90:91]")
    if adapt: A(f"  s_memrealtime {sr(sTM,2)}")
    A(f"  s_load_dwordx8 {sr(sQ,8)}, s[0:1], 0")
    A(f"  s_load_dwordx4 {sr(sOUT,4)}, s[0:1], 32")
    A(f"  s_load_dwordx2 {sr(sWS,2)}, s[0:1], 48")
    A(f"  v_lshrrev_b32 v{vTMP}, 6, v0")
    A(f"  v_and_b32 v0, 63, v0")
    A(f"  v_readfirstlane_b32 s{sWAVE}, v{vTMP}")
    if order == "xhead":
        A(f"  s_lshr_b32 s{sHEAD}, s{sWG}, 5\n  s_lshl_b32 s{sHEAD}, s{sHEAD}, 3\n  s_and_b32 s{sTMP}, s{sWG}, 7\n  s_add_u32 s{sHEAD}, s{sHEAD}, s{sTMP}")
        A(f"  s_bfe_u32 s{sQTR}, s{sWG}, 0x20003")
    else:
        A(f"  s_lshr_b32 s{sHEAD}, s{sWG}, 2\n  s_and_b32 s{sQTR}, s{sWG}, 3")
    A(f"  v_lshlrev_b32 v{vTMP}, 4, v0")
    A(f"  v_and_b32 v{T+3}, 48, v0\n  v_lshlrev_b32 v{T+3}, 2, v{T+3}")
    A(f"  v_and_b32 v{T}, 7, v0\n  v_lshl_add_u32 v{T}, v{T}, 8, v{T+3}")
    A(f"  s_lshl_b32 s{sTMP}, s{sQTR}, 2\n  s_add_u32 s{sTMP}, s{sTMP}, s{sWAVE}\n  s_lshl_b32 s{sTMP}, s{sTMP}, 12")
    A(f"  v_add_u32 v{vA}, s{sTMP}, v{vTMP}")
    A(f"  s_mov_b32 s{sT1}, {T1OFF}\n  s_mov_b32 s{sT2}, {STEP}")
    A(f"  s_lshl_b32 s{sTMP}, s{sHEAD}, 21\n  s_lshr_b32 s{sTMP+1}, s{sHEAD}, 11")
    A(f"  s_mov_b32 s{sKSRD+2}, {SIZE}\n  s_mov_b32 s{sKSRD+3}, 0x20000")
    A(f"  s_mov_b32 s{sVSRD+2}, {SIZE}\n  s_mov_b32 s{sVSRD+3}, 0x20000")
    A(f"  s_movk_i32 s{sXSRD+2}, 0x800\n  s_mov_b32 s{sXSRD+3}, 0x20000")
    A("  s_waitcnt lgkmcnt(0)")
    A(f"  s_mov_b32 s{sXSRD}, s{sOM}\n  s_mov_b32 s{sXSRD+1}, s{sOM+1}")
    W = XV
    for r in range(4):
        A(f"  buffer_load_dwordx4 {vr(W+r*4,4)}, v{T}, {sr(sXSRD,4)}, 0 offen offset:{r*16}")
    A(f"  s_cmp_eq_u32 s{sWAVE}, 4\n  s_cbranch_scc1 L_helper")
    A(f"  s_add_u32 s{sKSRD}, s{sKP}, s{sTMP}\n  s_addc_u32 s{sKSRD+1}, s{sKP+1}, s{sTMP+1}")
    A(f"  s_add_u32 s{sVSRD}, s{sVP}, s{sTMP}\n  s_addc_u32 s{sVSRD+1}, s{sVP+1}, s{sTMP+1}")
    stamp("kernarg")

    def issue(i, first=False):
        i %= 16
        piece, r = i >> 2, i & 3
        srd = sVSRD if piece & 1 else sKSRD
        so = "0" if first else (f"s{sT1}", "0", f"s{sT2}", f"s{sT1}")[piece]
        A(f"  buffer_load_dwordx4 {vr(RING+i*4,4)}, v{vA}, {sr(srd,4)}, {so} offen offset:{r*1024} {flags}")
        if i == 15: A(f"  v_add_u32 v{vA}, {hex(STEP)}, v{vA}")
    def consts():
        for p, val in ((sSCALE, 0x3e9837f0), (sLOG2E, 0x3fb8aa3c), (sISM, 0x3eb504f3), (sEPS, 0x358637bd)):
            A(f"  s_mov_b32 s{p}, {hex(val)}\n  s_mov_b32 s{p+1}, {hex(val)}")
        A(f"  s_mov_b32 s{sHI}, 0xffff0000\n  s_mov_b32 s{sPLO}, 0x05040100\n  s_mov_b32 s{sPHI}, 0x07060302")
        for k, val in enumerate((0x22222222, 0x44444444, 0x88888888)):
            A(f"  s_mov_b32 s{sMQ+2*k}, {hex(val)}\n  s_mov_b32 s{sMQ+2*k+1}, {hex(val)}")
    def ws_srd():
        A(f"  s_lshl_b32 s{sTMP}, s{sHEAD}, 15")
        A(f"  s_add_u32 s{sWSRD}, s{sWS}, s{sTMP}\n  s_addc_u32 s{sWSRD+1}, s{sWS+1}, 0")
        A(f"  s_load_dword s{sTAG}, {sr(sWSRD,2)}, {hex(EOFF)}")
        A(f"  s_mov_b32 s{sWSRD+2}, 0x8000\n  s_mov_b32 s{sWSRD+3}, 0x20000")
        A(f"  s_getreg_b32 s{sXCC}, hwreg(HW_REG_XCC_ID, 0, 4)")
    def pair_perms(n):
        piece, pp = n >> 2, (n & 3) >> 1
        a, b = RING + (n - 1) * 4, RING + n * 4
        for q in range(4):
            for h in range(2):
                e = 2 * q + h
                dst = XV + 4 * e + 2 * (piece >> 1) + pp if piece & 1 else XK + 2 * e + pp
                A(f"  v_perm_b32 v{dst}, v{b+q}, v{a+q}, s{sPHI if h else sPLO}")
    def opperm(dst, src):
        for q in range(4):
            for h in range(2):
                for rr in range(2):
                    A(f"  v_perm_b32 v{dst+q*4+h*2+rr}, v{src+(2*rr+1)*4+q}, v{src+(2*rr)*4+q}, s{sPHI if h else sPLO}")
    def pick(dst, src):
        A(f"  v_cndmask_b32 v{dst}, v{src}, v{src+1}, {sr(sMQ,2)}")
        A(f"  v_cndmask_b32 v{dst}, v{dst}, v{src+2}, {sr(sMQ+2,2)}")
        A(f"  v_cndmask_b32 v{dst}, v{dst}, v{src+3}, {sr(sMQ+4,2)}")
    def scale_unpack(a):
        for i in range(4):
            A(f"  v_lshlrev_b32 v{T+2*i}, 16, v{a+i}\n  v_and_b32 v{T+2*i+1}, s{sHI}, v{a+i}")
    def scale_rest(a):
        for i in range(4): A(f"  v_pk_mul_f32 {vr(T+2*i,2)}, {vr(T+2*i,2)}, {sr(sSCALE,2)}")
        for i in range(4): A(f"  v_cvt_pk_bf16_f32 v{a+i}, v{T+2*i}, v{T+2*i+1}")
    def unpack4(dst, p0, p1):
        A(f"  v_lshlrev_b32 v{dst}, 16, v{p0}\n  v_and_b32 v{dst+1}, s{sHI}, v{p0}")
        A(f"  v_lshlrev_b32 v{dst+2}, 16, v{p1}\n  v_and_b32 v{dst+3}, s{sHI}, v{p1}")
    def pack4(src, p0, p1):
        A(f"  v_cvt_pk_bf16_f32 v{p0}, v{src}, v{src+1}\n  v_cvt_pk_bf16_f32 v{p1}, v{src+2}, v{src+3}")
    def phi_tail():
        pack4(C, T, T+1); unpack4(C, T, T+1)
        A(f"  v_pk_mul_f32 {vr(C,2)}, {vr(C,2)}, {sr(sLOG2E,2)}\n  v_pk_mul_f32 {vr(C+2,2)}, {vr(C+2,2)}, {sr(sLOG2E,2)}")
        for r in range(4): A(f"  v_exp_f32 v{C+r}, v{C+r}")
        A("  s_nop 0")
        pack4(C, T, T+1); unpack4(C, T, T+1)
        A(f"  v_pk_mul_f32 {vr(C,2)}, {vr(C,2)}, {sr(sISM,2)}\n  v_pk_mul_f32 {vr(C+2,2)}, {vr(C+2,2)}, {sr(sISM,2)}")
        pack4(C, T, T+1); unpack4(C, T, T+1)
        A(f"  v_pk_add_f32 {vr(C,2)}, {vr(C,2)}, {sr(sEPS,2)}\n  v_pk_add_f32 {vr(C+2,2)}, {vr(C+2,2)}, {sr(sEPS,2)}")
        pack4(C, T, T+1)
    def poll_loads(P):
        for w in range(3):
            A(f"  buffer_load_dwordx4 {vr(P+w*8,4)}, v{vX}, {sr(sWSRD,4)}, s{sS1+w} offen sc1")
            A(f"  buffer_load_dwordx2 {vr(P+w*8+4,2)}, v{vC}, {sr(sWSRD,4)}, s{sS1+w} offen sc1")
    def steps(t, j0):
        g = G1 if t else G0
        om = OM1 if t else OM0
        for k in range(4):
            A(f"  v_mfma_f32_16x16x16_bf16 {vr(DT+4*k,4)}, {vr(XK+2*(2*j0+k),2)}, {vr(ID,2)}, 0")
        A("  s_nop 5")
        def mul(k):
            for r in (0, 2): A(f"  v_pk_mul_f32 {vr(DT+4*k+r,2)}, {vr(DT+4*k+r,2)}, {sr(sSCALE,2)}")
        def cvt(s):
            for k in range(2):
                for r in range(2):
                    A(f"  v_cvt_pk_bf16_f32 v{KS+4*s+2*k+r}, v{DT+4*(2*s+k)+2*r}, v{DT+4*(2*s+k)+2*r+1}")
        def mf(s):
            j = j0 + s
            A(f"  v_mfma_f32_16x16x32_bf16 {vr(D,4)}, {vr(KS+4*s,4)}, {vr(om+4*j,4)}, {'0' if (t, j) == (0, 0) else vr(D,4)}")
            A(f"  v_mfma_f32_16x16x32_bf16 {vr(g,4)}, {vr(KS+4*s,4)}, {vr(KS+4*s,4)}, {'0' if j == 0 else vr(g,4)}")
        mul(0); mul(1); cvt(0); mul(2); mul(3); mf(0); cvt(1)
        A("  s_nop 1")
        mf(1)

    pro = [(8 + i, True) for i in range(4)] + [(i, False) for i in range(Dp + 1)]
    for i in range(Dp): issue(*pro[i])
    stamp("issued")
    ws_srd()
    A(f"  s_lshl_b32 s{sSLOT}, s{sQTR}, 13")
    consts()
    A(f"  s_mov_b32 s{sMLO}, 0x00ff00ff\n  s_mov_b32 s{sMLO+1}, 0x00ff00ff")
    for r in range(4):
        m = sum(1 << (20 * g + r) for g in range(4))
        A(f"  s_mov_b32 s{sMD+2*r}, {hex(m & 0xffffffff)}\n  s_mov_b32 s{sMD+2*r+1}, {hex(m >> 32)}")
    A(f"  v_mov_b32 v{XP+1}, 0\n  v_mov_b32 v{SEL+1}, 0")
    A(f"  v_mov_b32 v{T}, 0xbf00\n  v_mov_b32 v{T+1}, 0xbf000000")
    A(f"  v_cndmask_b32 v{SEL}, v{T+1}, v{T}, {sr(sMLO,2)}")
    A(f"  v_mov_b32 v{T}, 0x3f80\n  v_mov_b32 v{T+1}, 0x3f800000")
    for k in range(2):
        A(f"  v_cndmask_b32 v{ID+k}, 0, v{T}, {sr(sMD+4*k,2)}")
        A(f"  v_cndmask_b32 v{ID+k}, v{ID+k}, v{T+1}, {sr(sMD+4*k+2,2)}")
    for r in range(4): A(f"  v_mov_b32 v{ONES+r}, 0x3f803f80")
    for r in range(4): A(f"  v_mov_b32 v{ACCZ+r}, 0")
    for r in range(32): A(f"  v_mov_b32 v{ACC+r}, 0")
    for w in range(1, 4): A(f"  s_xor_b32 s{sS1+w-1}, s{sSLOT}, {hex(w*8192)}")
    A(f"  s_movk_i32 s{sME}, {hex(POFF)}")
    A(f"  s_lshl_b32 s{sTMP}, s{sWAVE}, 10")
    A(f"  v_add_u32 v{vX}, s{sTMP}, v{vTMP}")
    A(f"  v_lshrrev_b32 v{vZW}, 2, v{vX}")
    A(f"  v_lshrrev_b32 v{vC}, 1, v{vX}\n  v_add_u32 v{vC}, 0x1000, v{vC}")
    A(f"  v_lshrrev_b32 v{vZR}, 2, v{vTMP}\n  v_add_u32 v{vZR}, {LDS_Z}, v{vZR}")
    A(f"  s_lshl_b32 s{sTMP}, s{sWAVE}, 12")
    A(f"  v_add_u32 v{vL}, s{sTMP}, v{vTMP}")
    A(f"  s_mov_b32 s{sXSRD}, s{sOUT}\n  s_mov_b32 s{sXSRD+1}, s{sOUT+1}\n  s_movk_i32 s{sXSRD+2}, 0x4000\n  s_mov_b32 s{sXSRD+3}, 0x20000")
    A(f"  v_and_b32 v{T+4}, 0xf0, v{vTMP}")
    A(f"  v_lshrrev_b32 v{T+6}, 9, v{vTMP}")
    A(f"  v_lshl_add_u32 v{T+4}, v{T+6}, 3, v{T+4}")
    A(f"  s_lshl_b32 s{sTMP}, s{sHEAD}, 8\n  s_lshl_b32 s{sTMP+1}, s{sWAVE}, 1\n  s_add_u32 s{sTMP}, s{sTMP}, s{sTMP+1}")
    A(f"  v_add_u32 v{vO}, s{sTMP}, v{T+4}")
    if adapt: A(f"  s_add_u32 s{sDUE}, s{sTM}, {adapt[1] + adapt[2]}\n  s_mov_b64 vcc, 0\n  s_mov_b32 s{sNB}, 0")
    for n in range(5):
        A(f"  s_waitcnt vmcnt({Dp-1})")
        if n == 0: stamp("firstdata")
        issue(*pro[n + Dp])
        if n == 0: opperm(OM1, W)
        if n == 1:
            pair_perms(9)
            for r in range(16): A(f"  v_cndmask_b32 v{OM0+r}, 0, v{OM1+r}, {sr(sMLO,2)}")
        if n == 2:
            for r in range(16): A(f"  v_cndmask_b32 v{OM1+r}, v{OM1+r}, 0, {sr(sMLO,2)}")
            A("  s_barrier")
        if n == 3: pair_perms(11); A("  s_nop 1"); steps(0, 0)
        if n == 4: steps(0, 2)
    A(f"  s_mov_b32 s{sCNT}, {NT - 1}\n  s_cmp_eq_u32 s{sCNT}, 0")
    stamp("loopstart")
    A("  s_branch L_join")
    P1, P2 = DT, XV
    ool_at = len(L)
    A("  .p2align 3\nL_loop:")
    loop_start = len(L)
    A(f"  s_sub_u32 s{sCNT}, s{sCNT}, 1")
    if adapt:
        A(f"  s_waitcnt lgkmcnt(0)\n  s_sub_u32 s{sTMP}, s{sTM}, s{sDUE}\n  s_add_u32 s{sDUE}, s{sDUE}, {adapt[1]}")
        A(f"  s_cmp_gt_i32 s{sTMP}, 0\n  s_cselect_b64 vcc, -1, 0")
        if stamps: A(f"  s_addc_u32 s{sNB}, s{sNB}, 0")
        if prog == 2: A(f"  s_mov_b32 m0, s{sCNT}\n  v_writelane_b32 v{vPROG}, s{sTM}, m0")
    A(f"  s_cmp_eq_u32 s{sCNT}, 0")
    ool = []
    S = list(range(8)) + list(range(12, 16))
    lastpos = [Dp - 1]; extra = [0]
    def service(n):
        if n == 1: A("L_join:")
        if n == 8: A("  s_cbranch_scc1 L_last13")
        elif n in S and n != 12: A(f"  s_cbranch_scc1 L_last{n}")
        if adapt: A(f"  s_cbranch_vccnz L_deep{n}")
        A(f"  s_waitcnt vmcnt({Dp - 1})")
        if n in bar: A("  s_barrier")
        issue(n + Dp)
        A(f"L_back{n}:")
        save = len(L)
        if adapt:
            DB = adapt[0]
            ddB = [min(DB, Dp + 15 - k) for k in range(16)]
            prevB = lambda k: Dp - 1 if k == 0 else k - 1 + ddB[k - 1]
            A(f"L_deep{n}:")
            A(f"  s_waitcnt vmcnt({prevB(n) - n})")
            if n in bar: A("  s_barrier")
            for i in range(prevB(n) + 1, n + ddB[n] + 1): issue(i)
            A(f"  s_branch L_back{n}")
        if n in S and n != 12:
            p = S.index(n)
            A(f"L_last{n}:")
            A(f"  s_waitcnt vmcnt({lastpos[0] - p + extra[0]})")
            if n in bar: A("  s_barrier")
            done = lastpos[0] == 11
            while lastpos[0] < min(11, p + DL):
                lastpos[0] += 1; issue(S[lastpos[0]])
            if lastpos[0] == 11 and not done:
                A(f"  buffer_load_dwordx4 {vr(T+4,4)}, off, {sr(sWSRD,4)}, s{sME} sc1"); extra[0] += 1
            if n == ep:
                assert lastpos[0] == 11 and n > 4
                poll_loads(P1); extra[0] += 6
            A(f"  s_branch L_back{n}")
        ool.extend(L[save:]); del L[save:]
        if adapt and n == tsn: A(f"  s_memrealtime {sr(sTM,2)}")
        if n & 1: pair_perms(n)
    def phi1():
        for r in range(4): A(f"  v_cvt_pk_bf16_f32 v{G0+r}, v{G0+r}, v{G1+r}")
        pack4(D, T, T+1)
        A(f"  v_cndmask_b32 v{XP}, 0, v{G0}, {sr(sMD,2)}")
        for r in range(1, 4): A(f"  v_cndmask_b32 v{XP}, v{XP}, v{G0+r}, {sr(sMD+2*r,2)}")
        unpack4(C, T, T+1)
        A("  s_nop 1")
        A(f"  v_mfma_f32_16x16x16_bf16 {vr(C,4)}, {vr(XP,2)}, {vr(SEL,2)}, {vr(C,4)}")
    def phi2():
        A("  s_nop 5")
        phi_tail()
        A(f"  v_cndmask_b32 v{PA}, 0, v{T}, {sr(sMLO,2)}\n  v_cndmask_b32 v{PA+1}, 0, v{T+1}, {sr(sMLO,2)}")
        A(f"  v_cndmask_b32 v{PA+2}, v{T}, 0, {sr(sMLO,2)}\n  v_cndmask_b32 v{PA+3}, v{T+1}, 0, {sr(sMLO,2)}")
    def zmf():
        A(f"  v_mfma_f32_16x16x32_bf16 {vr(ACCZ,4)}, {vr(PA,4)}, {vr(ONES,4)}, {vr(ACCZ,4)}")
    def pvall():
        for e in (0, 4, 1, 5, 2, 6, 3, 7):
            A(f"  v_mfma_f32_16x16x32_bf16 {vr(ACC+e*4,4)}, {vr(PA,4)}, {vr(XV+e*4,4)}, {vr(ACC+e*4,4)}")
    chunks = {3: lambda: (A("  s_nop 1"), steps(1, 0)), 4: lambda: steps(1, 2), 5: phi1, 6: phi2, 7: zmf,
              11: lambda: (A("  s_nop 1"), steps(0, 0)), 12: lambda: steps(0, 2), 15: pvall}
    for n in range(16):
        service(n)
        if n in chunks: chunks[n]()
    A("  s_cbranch_scc0 L_loop")
    if abl:
        body = L[loop_start:]; del L[loop_start:]
        for x in body:
            t = x.strip()
            if "valu" in abl and t.startswith("v_") and not t.startswith(("v_mfma", "v_add_u32", "v_writelane", "v_readfirst")): continue
            if "mfma" in abl and t.startswith("v_mfma"): continue
            L.append(x)
    L[ool_at:ool_at] = ool

    stamp("loopend")
    if tail: A("  s_memrealtime s[76:77]\n  s_memrealtime s[78:79]")
    if noepi: A("  s_waitcnt vmcnt(0)\n  s_branch L_fin")
    R = OM0
    CK, RZ = OM1, OM1 + 1
    PZ = OM1 + 6
    pick(T, ACCZ)
    A(f"  v_mov_b32 v{T+1}, v{T}")
    A("  s_nop 1")
    A(f"  v_permlane32_swap_b32 v{T}, v{T+1}")
    A(f"  v_add_f32 v{T}, v{T}, v{T+1}")
    A(f"  ds_write_b32 v{vZW}, v{T} offset:{LDS_Z}")
    for p in range(4):
        for r in range(4): A(f"  v_permlane32_swap_b32 v{ACC+p*4+r}, v{ACC+(p+4)*4+r}")
        for r in range(0, 4, 2): A(f"  v_pk_add_f32 {vr(ACC+p*4+r,2)}, {vr(ACC+p*4+r,2)}, {vr(ACC+(p+4)*4+r,2)}")
        A(f"  ds_write_b128 v{vL}, {vr(ACC+p*4,4)} offset:{p*1024}")
    A("  s_waitcnt lgkmcnt(0)")
    A(f"  s_add_u32 s{sTAG}, s{sTAG}, 0x9e3779b9")
    A(f"  s_add_u32 s{sME}, s{sTAG}, s{sXCC}")
    tstamp("prebar")
    A("  s_barrier")
    tstamp("postbar")
    for w in range(4): A(f"  ds_read_b128 {vr(R+w*4,4)}, v{vX} offset:{w*4096}")
    A(f"  ds_read2_b32 {vr(T,2)}, v{vZR} offset0:0 offset1:64")
    A(f"  ds_read2_b32 {vr(T+2,2)}, v{vZR} offset0:128 offset1:192")
    A(f"  ds_read_b128 {vr(PQ,4)}, v{vTMP} offset:{LDS_PQ}")
    A(f"  ds_read_b32 v{PZ}, v{vZR} offset:{LDS_PQZ - LDS_Z}")
    A("  s_waitcnt vmcnt(6)")
    A(f"  v_bitop3_b32 v{T+4}, v{T+4}, v{T+5}, s{sME} bitop3:0x7e")
    A(f"  v_bitop3_b32 v{T+6}, v{T+6}, v{T+7}, s{sME} bitop3:0x7e")
    A(f"  v_or_b32 v{T+4}, v{T+4}, v{T+6}")
    A(f"  v_cmp_ne_u32 vcc, 0, v{T+4}")
    A("  s_waitcnt lgkmcnt(2)")
    for r in (0, 2): A(f"  v_pk_add_f32 {vr(R+r,2)}, {vr(R+r,2)}, {vr(R+4+r,2)}")
    for r in (0, 2): A(f"  v_pk_add_f32 {vr(R+8+r,2)}, {vr(R+8+r,2)}, {vr(R+12+r,2)}")
    A(f"  v_pk_add_f32 {vr(T,2)}, {vr(T,2)}, {vr(T+2,2)}")
    for r in (0, 2): A(f"  v_pk_add_f32 {vr(R+r,2)}, {vr(R+r,2)}, {vr(R+8+r,2)}")
    A(f"  v_add_f32 v{RZ}, v{T}, v{T+1}")
    def publish(fl):
        A(f"  buffer_store_dwordx4 {vr(R,4)}, v{vX}, {sr(sWSRD,4)}, s{sSLOT} offen{fl}")
        A(f"  v_bitop3_b32 v{CK}, v{R}, v{R+1}, s{sTAG} bitop3:0x96")
        A(f"  v_bitop3_b32 v{T}, v{R+2}, v{R+3}, v{RZ} bitop3:0x96")
        A(f"  v_xor_b32 v{CK}, v{CK}, v{T}")
        A(f"  buffer_store_dwordx2 {vr(CK,2)}, v{vC}, {sr(sWSRD,4)}, s{sSLOT} offen{fl}")
    A("  s_cbranch_vccnz L_far")
    publish("")
    A("L_pub:")
    tstamp("pub")
    def check(P):
        for w in range(3): A(f"  v_bitop3_b32 v{T+w}, v{P+8*w}, v{P+8*w+1}, s{sTAG} bitop3:0x96")
        for w in range(3): A(f"  v_bitop3_b32 v{T+w}, v{P+8*w+2}, v{P+8*w+3}, v{T+w} bitop3:0x96")
        for w in range(3): A(f"  v_bitop3_b32 v{T+w}, v{P+8*w+4}, v{P+8*w+5}, v{T+w} bitop3:0x96")
        A(f"  v_or3_b32 v{T}, v{T}, v{T+1}, v{T+2}")
        A(f"  v_cmp_ne_u32 vcc, 0, v{T}")
        A("  s_nop 1")
    def combine(P):
        for r in (0, 2): A(f"  v_pk_add_f32 {vr(R+r,2)}, {vr(R+r,2)}, {vr(P+r,2)}")
        for r in (0, 2): A(f"  v_pk_add_f32 {vr(P+8+r,2)}, {vr(P+8+r,2)}, {vr(P+16+r,2)}")
        A(f"  v_add_f32 v{RZ}, v{RZ}, v{P+5}\n  v_add_f32 v{P+13}, v{P+13}, v{P+21}")
        for r in (0, 2): A(f"  v_pk_add_f32 {vr(R+r,2)}, {vr(R+r,2)}, {vr(P+8+r,2)}")
        A(f"  v_add_f32 v{RZ}, v{RZ}, v{P+13}")
    poll_loads(P2)
    A("  s_waitcnt vmcnt(8)")
    check(P1)
    A("  s_cbranch_vccnz L_try2")
    A("L_use1:")
    tstamp("got")
    combine(P1)
    A("L_final:")
    A("  s_waitcnt lgkmcnt(0)")
    pack4(R, T, T+1)
    A(f"  v_cvt_pk_bf16_f32 v{T+2}, v{RZ}, v{RZ}")
    unpack4(R, T, T+1)
    A(f"  v_and_b32 v{RZ}, s{sHI}, v{T+2}")
    A(f"  v_mul_f32 v{RZ}, v{RZ}, v{PZ}")
    A(f"  v_mul_f32 v{R}, v{R}, v{PQ}\n  v_fmac_f32 v{R}, v{R+1}, v{PQ+1}")
    A(f"  v_add_f32_dpp v{RZ}, v{RZ}, v{RZ} quad_perm:[1,0,3,2] row_mask:0xf bank_mask:0xf")
    A(f"  v_fmac_f32 v{R}, v{R+2}, v{PQ+2}\n  v_fmac_f32 v{R}, v{R+3}, v{PQ+3}")
    A(f"  v_add_f32_dpp v{RZ}, v{RZ}, v{RZ} quad_perm:[2,3,0,1] row_mask:0xf bank_mask:0xf")
    A(f"  v_mov_b32 v{R+1}, v{R}\n  v_mov_b32 v{RZ+1}, v{RZ}\n  s_nop 1")
    A(f"  v_permlane16_swap_b32 v{R}, v{R+1}\n  v_permlane16_swap_b32 v{RZ}, v{RZ+1}")
    A(f"  v_add_f32 v{R}, v{R}, v{R+1}\n  v_add_f32 v{RZ}, v{RZ}, v{RZ+1}")
    A(f"  v_cvt_pk_bf16_f32 v{T}, v{R}, v{RZ}")
    A(f"  v_lshlrev_b32 v{R}, 16, v{T}\n  v_and_b32 v{R+1}, s{sHI}, v{T}")
    A(f"  v_add_f32 v{R+1}, s{sEPS}, v{R+1}")
    A(f"  v_mul_f32 v{R}, 0x3e800000, v{R}")
    A(f"  v_cvt_pk_bf16_f32 v{T}, v{R+1}, v{R+1}")
    A(f"  v_and_b32 v{R+1}, s{sHI}, v{T}")
    A(f"""  v_mul_f32 v{R+1}, 0x3e800000, v{R+1}
  v_rcp_f32 v{R+1}, v{R+1}
  v_mov_b32 v{T+1}, s{sTAG}
  v_mul_f32 v{R}, v{R}, v{R+1}
  v_cvt_pk_bf16_f32 v{R}, v{R}, v{R}""")
    A("  s_mov_b32 exec_lo, 0xffff\n  s_mov_b32 exec_hi, 0xffff")
    A(f"  buffer_store_short v{R}, v{vO}, {sr(sXSRD,4)}, 0 offen")
    A(f"  s_mov_b64 exec, 1\n  s_movk_i32 s{sTMP+2}, {hex(EOFF)}")
    A(f"  buffer_store_dword v{T+1}, off, {sr(sWSRD,4)}, s{sTMP+2}")
    tstamp("outissue")
    if stamps: A("  s_branch L_fin")
    else: A("  s_endpgm")
    A("L_try2:\n  s_waitcnt vmcnt(0)")
    poll_loads(P1)
    check(P2)
    A("  s_cbranch_vccnz L_try3")
    tstamp("got")
    combine(P2)
    A("  s_branch L_final")
    A("L_try3:\n  s_waitcnt vmcnt(0)")
    check(P1)
    A("  s_cbranch_vccz L_use1")
    if stamps: A("  s_branch L_fin")
    else: A("  s_endpgm")
    A("L_far:")
    publish(" sc1")
    A("  s_branch L_pub")
    A("L_fin:")
    if prog:
        A("  s_mov_b64 exec, -1")
        A(f"  s_lshl_b32 s87, s{sWG}, 2\n  s_add_u32 s87, s87, s{sWAVE}\n  s_lshl_b32 s87, s87, 8\n  s_add_u32 s87, s87, 0x2000000")
        A(f"  v_lshrrev_b32 v1, 2, v{vTMP}\n  v_add_u32 v1, s87, v1\n  global_store_dword v1, v{vPROG}, {sr(sWS,2)}")
        A("; MID 14")
    if stamps:
        A("  s_mov_b64 exec, 1\n  s_waitcnt vmcnt(0)\n  s_memrealtime s[84:85]\n  s_memtime s[92:93]\n  s_getreg_b32 s86, hwreg(HW_REG_XCC_ID)\n  s_waitcnt lgkmcnt(0)")
        if adapt: A(f"  s_mov_b32 s92, s{sNB}\n  s_mov_b32 s90, 0\n; ADAPT")
        A("  s_sub_u32 s92, s92, s90\n  s_lshl_b32 s92, s92, 4\n  s_and_b32 s86, s86, 15\n  s_or_b32 s86, s86, s92")
        A(f"  s_lshl_b32 s87, s{sWG}, 2\n  s_add_u32 s87, s87, s{sWAVE}\n  s_lshl_b32 s87, s87, 4\n  s_add_u32 s87, s87, 0x1000000")
        A(f"  v_mov_b32 v4, s80\n  v_mov_b32 v5, s86\n  v_mov_b32 v6, s84\n  v_mov_b32 v7, s82\n  v_mov_b32 v1, s87")
        A(f"  global_store_dwordx4 v1, v[4:7], {sr(sWS,2)}")
        if tail:
            A(f"  v_mov_b32 v8, s76\n  v_mov_b32 v9, s78\n  v_mov_b32 v10, s84\n  v_mov_b32 v11, s{sQTR}\n  v_add_u32 v1, 0x800000, v1")
            A(f"  global_store_dwordx4 v1, v[8:11], {sr(sWS,2)}\n; TAILS")
    A("L_done:\n  s_endpgm")

    A("L_helper:")
    WQ = XK
    A(f"  s_mov_b32 s{sKSRD}, s{sQ}\n  s_mov_b32 s{sKSRD+1}, s{sQ+1}\n  s_movk_i32 s{sKSRD+2}, 0x4000\n  s_mov_b32 s{sKSRD+3}, 0x20000")
    A(f"  s_lshl_b32 s{sTMP}, s{sHEAD}, 8")
    A(f"  v_add_u32 v{T+3}, s{sTMP}, v{T+3}")
    for r in range(4):
        A(f"  buffer_load_dwordx4 {vr(WQ+r*4,4)}, v{T+3}, {sr(sKSRD,4)}, 0 offen offset:{r*16}")
    ws_srd()
    A("  s_barrier")
    consts()
    OMR, QR = ACC, ACC + 16
    A(f"  s_waitcnt vmcnt(0) lgkmcnt(0)")
    A(f"  s_add_u32 s{sTAG}, s{sTAG}, 0x9e3779b9\n  s_add_u32 s{sTAG}, s{sTAG}, s{sXCC}")
    A(f"  s_lshl_b32 s{sTMP}, s{sQTR}, 2\n  s_add_u32 s{sTMP}, s{sTMP}, {hex(POFF)}")
    A(f"  v_mov_b32 v{RING}, s{sTAG}\n  s_mov_b64 exec, 1")
    A(f"  buffer_store_dword v{RING}, off, {sr(sWSRD,4)}, s{sTMP}\n  s_mov_b64 exec, -1")
    if hb >= 1: A("  s_barrier")
    opperm(OMR, W); opperm(QR, WQ)
    for j in range(4):
        scale_unpack(QR+j*4); scale_rest(QR+j*4)
    A("  s_nop 1")
    for j in range(4):
        c0 = "0" if j == 0 else vr(D,4); c1 = "0" if j == 0 else vr(G0,4)
        A(f"  v_mfma_f32_16x16x32_bf16 {vr(D,4)}, {vr(OMR+j*4,4)}, {vr(QR+j*4,4)}, {c0}")
        A(f"  v_mfma_f32_16x16x32_bf16 {vr(G0,4)}, {vr(QR+j*4,4)}, {vr(QR+j*4,4)}, {c1}")
    A("  s_nop 7")
    pack4(D, T, T+1); unpack4(C, T, T+1)
    A(f"  v_cvt_pk_bf16_f32 v{T+2}, v{G0}, v{G0}")
    A(f"  v_and_b32 v{T+2}, s{sHI}, v{T+2}")
    for r in range(4): A(f"  v_fma_f32 v{C+r}, v{T+2}, -0.5, v{C+r}")
    phi_tail(); unpack4(PQ, T, T+1)
    pick(T, PQ)
    A(f"  v_lshrrev_b32 v{T+1}, 2, v{vTMP}")
    A(f"  ds_write_b128 v{vTMP}, {vr(PQ,4)} offset:{LDS_PQ}")
    A(f"  ds_write_b32 v{T+1}, v{T} offset:{LDS_PQZ}")
    A("  s_waitcnt lgkmcnt(0)\n  s_endpgm")
    A(f""".section .rodata,"a"
.p2align 6
.amdhsa_kernel {NAME}
  .amdhsa_next_free_vgpr {NVGPR}
  .amdhsa_next_free_sgpr {96 if stamps else 76}
  .amdhsa_accum_offset {NVGPR}
  .amdhsa_group_segment_fixed_size 0
  .amdhsa_kernarg_size 56
  .amdhsa_user_sgpr_count 2
  .amdhsa_user_sgpr_kernarg_segment_ptr 1
  .amdhsa_system_sgpr_workgroup_id_x 1
  .amdhsa_float_denorm_mode_32 3
.end_amdhsa_kernel""")
    return "\n".join(L) + "\n"

if __name__ == "__main__":
    if len(sys.argv) == 2:
        cfgs = eval(open(sys.argv[1]).read())
        for n, c in cfgs.items():
            open(f"{n}.s", "w").write(gen(**c))
        print(" ".join(f"{n}.s" for n in cfgs))
    else:
        kw = eval("dict(" + (sys.argv[2] if len(sys.argv) > 2 else "") + ")")
        open(sys.argv[1], "w").write(gen(**kw))
```

```python
import sys

NAME = "standalone__linear_kernel_rfa__decode_kernel"
HDR = """; Kernarg layout for this problem (56 bytes, ptrs only, base s[0:1]):
"""

vO, vA, vX, vTMP = 0, 1, 2, 3
D, G0, G1, C, PA = 4, 8, 12, 16, 20
XP, SEL, ONES = 24, 26, 28
T = 32
ACCZ, PQ, ACC = 40, 44, 48
OM0, OM1 = 80, 96
XV = 112
XK = 144
DT = 160
KS = 176
ID = 184
vC, vL = 186, 187
RING = 188
vZW, vZR, vP, vPROG = 220, 221, 222, 223
NVGPR = 224
sWG, sWAVE, sHEAD, sQTR, sTAG, sXCC = 2, 3, 4, 5, 6, 7
sKSRD, sVSRD, sWSRD, sXSRD = 8, 12, 16, 20
sSCALE, sLOG2E, sISM, sEPS = 24, 26, 28, 30
sHI, sPLO, sPHI, sT1 = 32, 33, 34, 35
sMD = 36
sMLO = 44
sCNT, sSLOT = 46, 47
sQ, sKP, sVP, sOM, sOUT, sDBG, sWS = 48, 50, 52, 54, 56, 58, 60
sMQ = 48
sTMP = 62
sDUE, sNB = 66, 67
sS1 = 68
sME, sINC = 71, 72
sTM = 74
LDS_Z, LDS_PQ, LDS_PQZ, LDS_PHI = 16384, 20480, 21504, 24576
EOFF, POFF = 0x1f00, 0x1e00

def vr(a, n): return f"v[{a}:{a+n-1}]"
def sr(a, n): return f"s[{a}:{a+n-1}]"

def gen(stamps=False, lds=24576 + 65536, flags="nt", order="xhead", at="loopend", Dp=5, abl=(), noepi=False, prog=0, tail=None,
        ep=6, DL=6, bar=(0,), hb=0, adapt=(6, 107, 150), tsn=4, paceV=None):
    L = []
    def A(s):
        for x in s.split("\n"): L.append(x)
    def stamp(name):
        if stamps and at == name: A("  s_memrealtime s[82:83]")
    def tstamp(name):
        if tail == name: A("  s_memrealtime s[78:79]")
    NWG = 256; NT = 16
    SIZE, T1OFF, STEP = 2097152, 65536, 131072
    A(HDR + f"; @launch grid=({NWG},1,1) block=(320,1,1) lds={lds}")
    A('.amdgcn_target "amdgcn-amd-amdhsa--gfx950"\n.text')
    A(f".globl {NAME}\n.p2align 8\n.type {NAME},@function\n{NAME}:")
    A(f"  s_cmp_ge_u32 s{sWG}, {NWG}\n  s_cbranch_scc1 L_done")
    if stamps: A("  s_memrealtime s[80:81]\n  s_memtime s[90:91]")
    if adapt: A(f"  s_memrealtime {sr(sTM,2)}")
    A(f"  s_load_dwordx8 {sr(sQ,8)}, s[0:1], 0")
    A(f"  s_load_dwordx4 {sr(sOUT,4)}, s[0:1], 32")
    A(f"  s_load_dwordx2 {sr(sWS,2)}, s[0:1], 48")
    A(f"  v_lshrrev_b32 v{vTMP}, 6, v0")
    A(f"  v_and_b32 v0, 63, v0")
    A(f"  v_readfirstlane_b32 s{sWAVE}, v{vTMP}")
    if order == "xhead":
        A(f"  s_lshr_b32 s{sHEAD}, s{sWG}, 5\n  s_lshl_b32 s{sHEAD}, s{sHEAD}, 3\n  s_and_b32 s{sTMP}, s{sWG}, 7\n  s_add_u32 s{sHEAD}, s{sHEAD}, s{sTMP}")
        A(f"  s_bfe_u32 s{sQTR}, s{sWG}, 0x20003")
    else:
        A(f"  s_lshr_b32 s{sHEAD}, s{sWG}, 2\n  s_and_b32 s{sQTR}, s{sWG}, 3")
    A(f"  v_lshlrev_b32 v{vTMP}, 4, v0")
    A(f"  v_and_b32 v{T+3}, 48, v0\n  v_lshlrev_b32 v{T+3}, 2, v{T+3}")
    A(f"  v_and_b32 v{T}, 7, v0\n  v_lshl_add_u32 v{T}, v{T}, 8, v{T+3}")
    A(f"  s_lshl_b32 s{sTMP}, s{sQTR}, 2\n  s_add_u32 s{sTMP}, s{sTMP}, s{sWAVE}\n  s_lshl_b32 s{sTMP}, s{sTMP}, 12")
    A(f"  v_add_u32 v{vA}, s{sTMP}, v{vTMP}")
    A(f"  s_mov_b32 s{sT1}, {T1OFF}\n  s_mov_b32 s{sINC}, {STEP}")
    A(f"  s_lshl_b32 s{sTMP}, s{sHEAD}, 21\n  s_lshr_b32 s{sTMP+1}, s{sHEAD}, 11")
    A(f"  s_mov_b32 s{sKSRD+2}, {SIZE}\n  s_mov_b32 s{sKSRD+3}, 0x20000")
    A(f"  s_movk_i32 s{sXSRD+2}, 0x800\n  s_mov_b32 s{sXSRD+3}, 0x20000")
    A("  s_waitcnt lgkmcnt(0)")
    A(f"  s_mov_b32 s{sXSRD}, s{sOM}\n  s_mov_b32 s{sXSRD+1}, s{sOM+1}")
    W = XV
    for r in range(4):
        A(f"  buffer_load_dwordx4 {vr(W+r*4,4)}, v{T}, {sr(sXSRD,4)}, 0 offen offset:{r*16}")
    A(f"  s_cmp_eq_u32 s{sWAVE}, 4\n  s_cbranch_scc1 L_helper")
    A(f"  s_add_u32 s{sKSRD}, s{sKP}, s{sTMP}\n  s_addc_u32 s{sKSRD+1}, s{sKP+1}, s{sTMP+1}")
    A(f"  s_add_u32 s{sVSRD}, s{sVP}, s{sTMP}\n  s_addc_u32 s{sVSRD+1}, s{sVP+1}, s{sTMP+1}")
    stamp("kernarg")

    def issue(i, ph="K"):
        i %= 8
        so = f"s{sT1}" if i >> 2 else "0"
        A(f"  buffer_load_dwordx4 {vr(RING+i*4,4)}, v{vA}, {sr(sKSRD,4)}, {so} offen offset:{(i&3)*1024} {flags}")
        if i == 7:
            A(f"  v_add_u32 v{vA}, s{sINC}, v{vA}")
            if ph == "K": A(f"  s_cselect_b64 {sr(sKSRD,2)}, {sr(sVSRD,2)}, {sr(sKSRD,2)}")
    def consts():
        for p, val in ((sSCALE, 0x3e9837f0), (sLOG2E, 0x3fb8aa3c), (sISM, 0x3eb504f3), (sEPS, 0x358637bd)):
            A(f"  s_mov_b32 s{p}, {hex(val)}\n  s_mov_b32 s{p+1}, {hex(val)}")
        A(f"  s_mov_b32 s{sHI}, 0xffff0000\n  s_mov_b32 s{sPLO}, 0x05040100\n  s_mov_b32 s{sPHI}, 0x07060302")
        for k, val in enumerate((0x22222222, 0x44444444, 0x88888888)):
            A(f"  s_mov_b32 s{sMQ+2*k}, {hex(val)}\n  s_mov_b32 s{sMQ+2*k+1}, {hex(val)}")
    def ws_srd():
        A(f"  s_lshl_b32 s{sTMP}, s{sHEAD}, 15")
        A(f"  s_add_u32 s{sWSRD}, s{sWS}, s{sTMP}\n  s_addc_u32 s{sWSRD+1}, s{sWS+1}, 0")
        A(f"  s_load_dword s{sTAG}, {sr(sWSRD,2)}, {hex(EOFF)}")
        A(f"  s_mov_b32 s{sWSRD+2}, 0x8000\n  s_mov_b32 s{sWSRD+3}, 0x20000")
        A(f"  s_getreg_b32 s{sXCC}, hwreg(HW_REG_XCC_ID, 0, 4)")
    def pair_perms(n, ph):
        t, pp = n >> 2, (n & 3) >> 1
        a, b = RING + (n - 1) * 4, RING + n * 4
        for q in range(4):
            for h in range(2):
                e = 2 * q + h
                dst = XV + 4 * e + 2 * t + pp if ph == "V" else XK + 2 * e + pp
                A(f"  v_perm_b32 v{dst}, v{b+q}, v{a+q}, s{sPHI if h else sPLO}")
    def opperm(dst, src):
        for q in range(4):
            for h in range(2):
                for rr in range(2):
                    A(f"  v_perm_b32 v{dst+q*4+h*2+rr}, v{src+(2*rr+1)*4+q}, v{src+(2*rr)*4+q}, s{sPHI if h else sPLO}")
    def pick(dst, src):
        A(f"  v_cndmask_b32 v{dst}, v{src}, v{src+1}, {sr(sMQ,2)}")
        A(f"  v_cndmask_b32 v{dst}, v{dst}, v{src+2}, {sr(sMQ+2,2)}")
        A(f"  v_cndmask_b32 v{dst}, v{dst}, v{src+3}, {sr(sMQ+4,2)}")
    def scale_unpack(a):
        for i in range(4):
            A(f"  v_lshlrev_b32 v{T+2*i}, 16, v{a+i}\n  v_and_b32 v{T+2*i+1}, s{sHI}, v{a+i}")
    def scale_rest(a):
        for i in range(4): A(f"  v_pk_mul_f32 {vr(T+2*i,2)}, {vr(T+2*i,2)}, {sr(sSCALE,2)}")
        for i in range(4): A(f"  v_cvt_pk_bf16_f32 v{a+i}, v{T+2*i}, v{T+2*i+1}")
    def unpack4(dst, p0, p1):
        A(f"  v_lshlrev_b32 v{dst}, 16, v{p0}\n  v_and_b32 v{dst+1}, s{sHI}, v{p0}")
        A(f"  v_lshlrev_b32 v{dst+2}, 16, v{p1}\n  v_and_b32 v{dst+3}, s{sHI}, v{p1}")
    def pack4(src, p0, p1):
        A(f"  v_cvt_pk_bf16_f32 v{p0}, v{src}, v{src+1}\n  v_cvt_pk_bf16_f32 v{p1}, v{src+2}, v{src+3}")
    def phi_tail():
        pack4(C, T, T+1); unpack4(C, T, T+1)
        A(f"  v_pk_mul_f32 {vr(C,2)}, {vr(C,2)}, {sr(sLOG2E,2)}\n  v_pk_mul_f32 {vr(C+2,2)}, {vr(C+2,2)}, {sr(sLOG2E,2)}")
        for r in range(4): A(f"  v_exp_f32 v{C+r}, v{C+r}")
        A("  s_nop 0")
        pack4(C, T, T+1); unpack4(C, T, T+1)
        A(f"  v_pk_mul_f32 {vr(C,2)}, {vr(C,2)}, {sr(sISM,2)}\n  v_pk_mul_f32 {vr(C+2,2)}, {vr(C+2,2)}, {sr(sISM,2)}")
        pack4(C, T, T+1); unpack4(C, T, T+1)
        A(f"  v_pk_add_f32 {vr(C,2)}, {vr(C,2)}, {sr(sEPS,2)}\n  v_pk_add_f32 {vr(C+2,2)}, {vr(C+2,2)}, {sr(sEPS,2)}")
        pack4(C, T, T+1)
    def poll_loads(P):
        for w in range(3):
            A(f"  buffer_load_dwordx4 {vr(P+w*8,4)}, v{vX}, {sr(sWSRD,4)}, s{sS1+w} offen sc1")
            A(f"  buffer_load_dwordx2 {vr(P+w*8+4,2)}, v{vC}, {sr(sWSRD,4)}, s{sS1+w} offen sc1")
    def steps(t, j0):
        g = G1 if t else G0
        om = OM1 if t else OM0
        for k in range(4):
            A(f"  v_mfma_f32_16x16x16_bf16 {vr(DT+4*k,4)}, {vr(XK+2*(2*j0+k),2)}, {vr(ID,2)}, 0")
        A("  s_nop 5")
        def mul(k):
            for r in (0, 2): A(f"  v_pk_mul_f32 {vr(DT+4*k+r,2)}, {vr(DT+4*k+r,2)}, {sr(sSCALE,2)}")
        def cvt(s):
            for k in range(2):
                for r in range(2):
                    A(f"  v_cvt_pk_bf16_f32 v{KS+4*s+2*k+r}, v{DT+4*(2*s+k)+2*r}, v{DT+4*(2*s+k)+2*r+1}")
        def mf(s):
            j = j0 + s
            A(f"  v_mfma_f32_16x16x32_bf16 {vr(D,4)}, {vr(KS+4*s,4)}, {vr(om+4*j,4)}, {'0' if (t, j) == (0, 0) else vr(D,4)}")
            A(f"  v_mfma_f32_16x16x32_bf16 {vr(g,4)}, {vr(KS+4*s,4)}, {vr(KS+4*s,4)}, {'0' if j == 0 else vr(g,4)}")
        mul(0); mul(1); cvt(0); mul(2); mul(3); mf(0); cvt(1)
        A("  s_nop 1")
        mf(1)

    for i in range(Dp): issue(i)
    stamp("issued")
    ws_srd()
    A(f"  s_lshl_b32 s{sSLOT}, s{sQTR}, 13")
    consts()
    A(f"  s_mov_b32 s{sMLO}, 0x00ff00ff\n  s_mov_b32 s{sMLO+1}, 0x00ff00ff")
    for r in range(4):
        m = sum(1 << (20 * g + r) for g in range(4))
        A(f"  s_mov_b32 s{sMD+2*r}, {hex(m & 0xffffffff)}\n  s_mov_b32 s{sMD+2*r+1}, {hex(m >> 32)}")
    A(f"  v_mov_b32 v{XP+1}, 0\n  v_mov_b32 v{SEL+1}, 0")
    A(f"  v_mov_b32 v{T}, 0xbf00\n  v_mov_b32 v{T+1}, 0xbf000000")
    A(f"  v_cndmask_b32 v{SEL}, v{T+1}, v{T}, {sr(sMLO,2)}")
    A(f"  v_mov_b32 v{T}, 0x3f80\n  v_mov_b32 v{T+1}, 0x3f800000")
    for k in range(2):
        A(f"  v_cndmask_b32 v{ID+k}, 0, v{T}, {sr(sMD+4*k,2)}")
        A(f"  v_cndmask_b32 v{ID+k}, v{ID+k}, v{T+1}, {sr(sMD+4*k+2,2)}")
    for r in range(4): A(f"  v_mov_b32 v{ONES+r}, 0x3f803f80")
    for r in range(4): A(f"  v_mov_b32 v{ACCZ+r}, 0")
    for r in range(32): A(f"  v_mov_b32 v{ACC+r}, 0")
    for w in range(1, 4): A(f"  s_xor_b32 s{sS1+w-1}, s{sSLOT}, {hex(w*8192)}")
    A(f"  s_movk_i32 s{sME}, {hex(POFF)}")
    A(f"  s_lshl_b32 s{sTMP}, s{sWAVE}, 10")
    A(f"  v_add_u32 v{vX}, s{sTMP}, v{vTMP}")
    A(f"  v_lshrrev_b32 v{vZW}, 2, v{vX}")
    A(f"  v_lshrrev_b32 v{vC}, 1, v{vX}\n  v_add_u32 v{vC}, 0x1000, v{vC}")
    A(f"  v_lshrrev_b32 v{vZR}, 2, v{vTMP}\n  v_add_u32 v{vZR}, {LDS_Z}, v{vZR}")
    A(f"  s_lshl_b32 s{sTMP}, s{sWAVE}, 12")
    A(f"  v_add_u32 v{vL}, s{sTMP}, v{vTMP}")
    A(f"  s_mov_b32 s{sXSRD}, s{sOUT}\n  s_mov_b32 s{sXSRD+1}, s{sOUT+1}\n  s_movk_i32 s{sXSRD+2}, 0x4000\n  s_mov_b32 s{sXSRD+3}, 0x20000")
    A(f"  v_and_b32 v{T+4}, 0xf0, v{vTMP}")
    A(f"  v_lshrrev_b32 v{T+6}, 9, v{vTMP}")
    A(f"  v_lshl_add_u32 v{T+4}, v{T+6}, 3, v{T+4}")
    A(f"  s_lshl_b32 s{sTMP}, s{sHEAD}, 8\n  s_lshl_b32 s{sTMP+1}, s{sWAVE}, 1\n  s_add_u32 s{sTMP}, s{sTMP}, s{sTMP+1}")
    A(f"  v_add_u32 v{vO}, s{sTMP}, v{T+4}")
    A(f"  s_lshl_b32 s{sTMP}, s{sWAVE}, 14\n  s_add_u32 s{sTMP}, s{sTMP}, {LDS_PHI}")
    A(f"  v_add_u32 v{vP}, s{sTMP}, v{vTMP}")
    if adapt: A(f"  s_add_u32 s{sDUE}, s{sTM}, {adapt[2]}\n  s_mov_b64 vcc, 0\n  s_mov_b32 s{sNB}, 0")
    A(f"  s_mov_b32 s{sCNT}, {NT - 1}\n  s_cmp_eq_u32 s{sCNT}, 0")
    for n in range(3):
        A(f"  s_waitcnt vmcnt({Dp-1})")
        if n == 0: stamp("firstdata")
        issue(n + Dp)
        if n == 0: opperm(OM1, W)
        if n == 1:
            pair_perms(1, "K")
            for r in range(16): A(f"  v_cndmask_b32 v{OM0+r}, 0, v{OM1+r}, {sr(sMLO,2)}")
        if n == 2:
            for r in range(16): A(f"  v_cndmask_b32 v{OM1+r}, v{OM1+r}, 0, {sr(sMLO,2)}")
            A("  s_barrier")
    stamp("loopstart")
    A("  s_branch L_joinK")
    P1, P2 = DT, XV
    def phi1():
        for r in range(4): A(f"  v_cvt_pk_bf16_f32 v{G0+r}, v{G0+r}, v{G1+r}")
        pack4(D, T, T+1)
        A(f"  v_cndmask_b32 v{XP}, 0, v{G0}, {sr(sMD,2)}")
        for r in range(1, 4): A(f"  v_cndmask_b32 v{XP}, v{XP}, v{G0+r}, {sr(sMD+2*r,2)}")
        unpack4(C, T, T+1)
        A("  s_nop 1")
        A(f"  v_mfma_f32_16x16x16_bf16 {vr(C,4)}, {vr(XP,2)}, {vr(SEL,2)}, {vr(C,4)}")
    def phi2():
        A("  s_nop 5")
        phi_tail()
        A(f"  v_cndmask_b32 v{PA}, 0, v{T}, {sr(sMLO,2)}\n  v_cndmask_b32 v{PA+1}, 0, v{T+1}, {sr(sMLO,2)}")
        A(f"  v_cndmask_b32 v{PA+2}, v{T}, 0, {sr(sMLO,2)}\n  v_cndmask_b32 v{PA+3}, v{T+1}, 0, {sr(sMLO,2)}")
        A(f"  ds_write_b128 v{vP}, {vr(PA,4)}")
        A(f"  v_add_u32 v{vP}, 0x400, v{vP}")
        A(f"  v_mfma_f32_16x16x32_bf16 {vr(ACCZ,4)}, {vr(PA,4)}, {vr(ONES,4)}, {vr(ACCZ,4)}")
    def getphi():
        A(f"  ds_read_b128 {vr(PA,4)}, v{vP}")
        A(f"  v_add_u32 v{vP}, 0x400, v{vP}")
    def pvall():
        A("  s_waitcnt lgkmcnt(0)")
        for e in (0, 4, 1, 5, 2, 6, 3, 7):
            A(f"  v_mfma_f32_16x16x32_bf16 {vr(ACC+e*4,4)}, {vr(PA,4)}, {vr(XV+e*4,4)}, {vr(ACC+e*4,4)}")
    def top(ph):
        A(f"  s_sub_u32 s{sCNT}, s{sCNT}, 1")
        if adapt:
            pace = adapt[1] if ph == "K" or paceV is None else paceV
            A(f"  s_waitcnt lgkmcnt(0)\n  s_sub_u32 s{sTMP}, s{sTM}, s{sDUE}\n  s_add_u32 s{sDUE}, s{sDUE}, {pace}")
            A(f"  s_cmp_gt_i32 s{sTMP}, 0\n  s_cselect_b64 vcc, -1, 0")
            if stamps: A(f"  s_addc_u32 s{sNB}, s{sNB}, 0")
            if prog == 2: A(f"  s_add_u32 m0, s{sCNT}, {16 if ph == 'K' else 0}\n  v_writelane_b32 v{vPROG}, s{sTM}, m0")
        A(f"  s_cmp_eq_u32 s{sCNT}, 0")
        if ph == "K": A(f"  s_cselect_b32 s{sINC}, {hex(-15 * STEP & 0xffffffff)}, s{sINC}")
    def loop(ph, chunks):
        ool = []
        ool_at = len(L)
        A(f"  .p2align 3\nL_loop{ph}:")
        loop_start = len(L)
        top(ph)
        lastpos = Dp - 1; extra = 0
        for n in range(8):
            if n == 3: A(f"L_join{ph}:")
            if ph == "V": A(f"  s_cbranch_scc1 L_last{n}")
            if adapt: A(f"  s_cbranch_vccnz L_deep{ph}{n}")
            A(f"  s_waitcnt vmcnt({Dp - 1})")
            if n in bar: A("  s_barrier")
            issue(n + Dp, ph)
            A(f"L_back{ph}{n}:")
            save = len(L)
            if adapt:
                DB = adapt[0]
                ddB = [min(DB, Dp + 7 - k) for k in range(8)]
                prevB = lambda k: Dp - 1 if k == 0 else k - 1 + ddB[k - 1]
                A(f"L_deep{ph}{n}:")
                A(f"  s_waitcnt vmcnt({prevB(n) - n})")
                if n in bar: A("  s_barrier")
                for i in range(prevB(n) + 1, n + ddB[n] + 1): issue(i, ph)
                A(f"  s_branch L_back{ph}{n}")
            if ph == "V":
                A(f"L_last{n}:")
                A(f"  s_waitcnt vmcnt({lastpos - n + extra})")
                if n in bar: A("  s_barrier")
                done = lastpos == 7
                while lastpos < min(7, n + DL):
                    lastpos += 1; issue(lastpos, ph)
                if lastpos == 7 and not done:
                    A(f"  buffer_load_dwordx4 {vr(T+4,4)}, off, {sr(sWSRD,4)}, s{sME} sc1"); extra += 1
                if n == ep:
                    assert lastpos == 7
                    poll_loads(P1); extra += 6
                A(f"  s_branch L_back{ph}{n}")
            ool.extend(L[save:]); del L[save:]
            if adapt and n == tsn: A(f"  s_memrealtime {sr(sTM,2)}")
            if n & 1: pair_perms(n, ph)
            if n in chunks: chunks[n]()
        A(f"  s_cbranch_scc0 L_loop{ph}")
        if abl:
            body = L[loop_start:]; del L[loop_start:]
            for x in body:
                t = x.strip()
                if "valu" in abl and t.startswith("v_") and not t.startswith(("v_mfma", "v_add_u32", "v_writelane", "v_readfirst")): continue
                if "mfma" in abl and t.startswith("v_mfma"): continue
                L.append(x)
        L[ool_at:ool_at] = ool
    loop("K", {0: lambda: steps(1, 2), 1: phi1, 2: phi2, 3: lambda: (A("  s_nop 1"), steps(0, 0)), 4: lambda: steps(0, 2),
               7: lambda: (A("  s_nop 1"), steps(1, 0))})
    stamp("mid")
    A(f"  s_mov_b32 s{sINC}, {STEP}")
    if adapt: A(f"  s_add_u32 s{sDUE}, s{sDUE}, {adapt[1]}\n  s_mov_b64 vcc, 0")
    for n in range(3):
        A(f"  s_waitcnt vmcnt({Dp-1})")
        if n in bar: A("  s_barrier")
        issue(n + Dp, "V")
        if n == 0: steps(1, 2)
        if n == 1: pair_perms(1, "V"); phi1()
        if n == 2: A("  s_nop 0"); phi2()
    A(f"  v_add_u32 v{vP}, {hex(-16 * 1024 & 0xffffffff)}, v{vP}")
    A(f"  s_mov_b32 s{sCNT}, {NT - 1}\n  s_cmp_eq_u32 s{sCNT}, 0")
    A("  s_branch L_joinV")
    loop("V", {4: getphi, 7: pvall})

    stamp("loopend")
    if tail: A("  s_memrealtime s[76:77]\n  s_memrealtime s[78:79]")
    if noepi: A("  s_waitcnt vmcnt(0)\n  s_branch L_fin")
    R = OM0
    CK, RZ = OM1, OM1 + 1
    PZ = OM1 + 6
    pick(T, ACCZ)
    A(f"  v_mov_b32 v{T+1}, v{T}")
    A("  s_nop 1")
    A(f"  v_permlane32_swap_b32 v{T}, v{T+1}")
    A(f"  v_add_f32 v{T}, v{T}, v{T+1}")
    A(f"  ds_write_b32 v{vZW}, v{T} offset:{LDS_Z}")
    for p in range(4):
        for r in range(4): A(f"  v_permlane32_swap_b32 v{ACC+p*4+r}, v{ACC+(p+4)*4+r}")
        for r in range(0, 4, 2): A(f"  v_pk_add_f32 {vr(ACC+p*4+r,2)}, {vr(ACC+p*4+r,2)}, {vr(ACC+(p+4)*4+r,2)}")
        A(f"  ds_write_b128 v{vL}, {vr(ACC+p*4,4)} offset:{p*1024}")
    A("  s_waitcnt lgkmcnt(0)")
    A(f"  s_add_u32 s{sTAG}, s{sTAG}, 0x9e3779b9")
    A(f"  s_add_u32 s{sME}, s{sTAG}, s{sXCC}")
    tstamp("prebar")
    A("  s_barrier")
    tstamp("postbar")
    for w in range(4): A(f"  ds_read_b128 {vr(R+w*4,4)}, v{vX} offset:{w*4096}")
    A(f"  ds_read2_b32 {vr(T,2)}, v{vZR} offset0:0 offset1:64")
    A(f"  ds_read2_b32 {vr(T+2,2)}, v{vZR} offset0:128 offset1:192")
    A(f"  ds_read_b128 {vr(PQ,4)}, v{vTMP} offset:{LDS_PQ}")
    A(f"  ds_read_b32 v{PZ}, v{vZR} offset:{LDS_PQZ - LDS_Z}")
    A("  s_waitcnt vmcnt(6)")
    A(f"  v_bitop3_b32 v{T+4}, v{T+4}, v{T+5}, s{sME} bitop3:0x7e")
    A(f"  v_bitop3_b32 v{T+6}, v{T+6}, v{T+7}, s{sME} bitop3:0x7e")
    A(f"  v_or_b32 v{T+4}, v{T+4}, v{T+6}")
    A(f"  v_cmp_ne_u32 vcc, 0, v{T+4}")
    A("  s_waitcnt lgkmcnt(2)")
    for r in (0, 2): A(f"  v_pk_add_f32 {vr(R+r,2)}, {vr(R+r,2)}, {vr(R+4+r,2)}")
    for r in (0, 2): A(f"  v_pk_add_f32 {vr(R+8+r,2)}, {vr(R+8+r,2)}, {vr(R+12+r,2)}")
    A(f"  v_pk_add_f32 {vr(T,2)}, {vr(T,2)}, {vr(T+2,2)}")
    for r in (0, 2): A(f"  v_pk_add_f32 {vr(R+r,2)}, {vr(R+r,2)}, {vr(R+8+r,2)}")
    A(f"  v_add_f32 v{RZ}, v{T}, v{T+1}")
    def publish(fl):
        A(f"  buffer_store_dwordx4 {vr(R,4)}, v{vX}, {sr(sWSRD,4)}, s{sSLOT} offen{fl}")
        A(f"  v_bitop3_b32 v{CK}, v{R}, v{R+1}, s{sTAG} bitop3:0x96")
        A(f"  v_bitop3_b32 v{T}, v{R+2}, v{R+3}, v{RZ} bitop3:0x96")
        A(f"  v_xor_b32 v{CK}, v{CK}, v{T}")
        A(f"  buffer_store_dwordx2 {vr(CK,2)}, v{vC}, {sr(sWSRD,4)}, s{sSLOT} offen{fl}")
    A("  s_cbranch_vccnz L_far")
    publish("")
    A("L_pub:")
    tstamp("pub")
    def check(P):
        for w in range(3): A(f"  v_bitop3_b32 v{T+w}, v{P+8*w}, v{P+8*w+1}, s{sTAG} bitop3:0x96")
        for w in range(3): A(f"  v_bitop3_b32 v{T+w}, v{P+8*w+2}, v{P+8*w+3}, v{T+w} bitop3:0x96")
        for w in range(3): A(f"  v_bitop3_b32 v{T+w}, v{P+8*w+4}, v{P+8*w+5}, v{T+w} bitop3:0x96")
        A(f"  v_or3_b32 v{T}, v{T}, v{T+1}, v{T+2}")
        A(f"  v_cmp_ne_u32 vcc, 0, v{T}")
        A("  s_nop 1")
    def combine(P):
        for r in (0, 2): A(f"  v_pk_add_f32 {vr(R+r,2)}, {vr(R+r,2)}, {vr(P+r,2)}")
        for r in (0, 2): A(f"  v_pk_add_f32 {vr(P+8+r,2)}, {vr(P+8+r,2)}, {vr(P+16+r,2)}")
        A(f"  v_add_f32 v{RZ}, v{RZ}, v{P+5}\n  v_add_f32 v{P+13}, v{P+13}, v{P+21}")
        for r in (0, 2): A(f"  v_pk_add_f32 {vr(R+r,2)}, {vr(R+r,2)}, {vr(P+8+r,2)}")
        A(f"  v_add_f32 v{RZ}, v{RZ}, v{P+13}")
    poll_loads(P2)
    A("  s_waitcnt vmcnt(8)")
    check(P1)
    A("  s_cbranch_vccnz L_try2")
    A("L_use1:")
    tstamp("got")
    combine(P1)
    A("L_final:")
    A("  s_waitcnt lgkmcnt(0)")
    pack4(R, T, T+1)
    A(f"  v_cvt_pk_bf16_f32 v{T+2}, v{RZ}, v{RZ}")
    unpack4(R, T, T+1)
    A(f"  v_and_b32 v{RZ}, s{sHI}, v{T+2}")
    A(f"  v_mul_f32 v{RZ}, v{RZ}, v{PZ}")
    A(f"  v_mul_f32 v{R}, v{R}, v{PQ}\n  v_fmac_f32 v{R}, v{R+1}, v{PQ+1}")
    A(f"  v_add_f32_dpp v{RZ}, v{RZ}, v{RZ} quad_perm:[1,0,3,2] row_mask:0xf bank_mask:0xf")
    A(f"  v_fmac_f32 v{R}, v{R+2}, v{PQ+2}\n  v_fmac_f32 v{R}, v{R+3}, v{PQ+3}")
    A(f"  v_add_f32_dpp v{RZ}, v{RZ}, v{RZ} quad_perm:[2,3,0,1] row_mask:0xf bank_mask:0xf")
    A(f"  v_mov_b32 v{R+1}, v{R}\n  v_mov_b32 v{RZ+1}, v{RZ}\n  s_nop 1")
    A(f"  v_permlane16_swap_b32 v{R}, v{R+1}\n  v_permlane16_swap_b32 v{RZ}, v{RZ+1}")
    A(f"  v_add_f32 v{R}, v{R}, v{R+1}\n  v_add_f32 v{RZ}, v{RZ}, v{RZ+1}")
    A(f"  v_cvt_pk_bf16_f32 v{T}, v{R}, v{RZ}")
    A(f"  v_lshlrev_b32 v{R}, 16, v{T}\n  v_and_b32 v{R+1}, s{sHI}, v{T}")
    A(f"  v_add_f32 v{R+1}, s{sEPS}, v{R+1}")
    A(f"  v_mul_f32 v{R}, 0x3e800000, v{R}")
    A(f"  v_cvt_pk_bf16_f32 v{T}, v{R+1}, v{R+1}")
    A(f"  v_and_b32 v{R+1}, s{sHI}, v{T}")
    A(f"""  v_mul_f32 v{R+1}, 0x3e800000, v{R+1}
  v_rcp_f32 v{R+1}, v{R+1}
  v_mov_b32 v{T+1}, s{sTAG}
  v_mul_f32 v{R}, v{R}, v{R+1}
  v_cvt_pk_bf16_f32 v{R}, v{R}, v{R}""")
    A("  s_mov_b32 exec_lo, 0xffff\n  s_mov_b32 exec_hi, 0xffff")
    A(f"  buffer_store_short v{R}, v{vO}, {sr(sXSRD,4)}, 0 offen")
    A(f"  s_mov_b64 exec, 1\n  s_movk_i32 s{sTMP+2}, {hex(EOFF)}")
    A(f"  buffer_store_dword v{T+1}, off, {sr(sWSRD,4)}, s{sTMP+2}")
    tstamp("outissue")
    if stamps: A("  s_branch L_fin")
    else: A("  s_endpgm")
    A("L_try2:\n  s_waitcnt vmcnt(0)")
    poll_loads(P1)
    check(P2)
    A("  s_cbranch_vccnz L_try3")
    tstamp("got")
    combine(P2)
    A("  s_branch L_final")
    A("L_try3:\n  s_waitcnt vmcnt(0)")
    check(P1)
    A("  s_cbranch_vccz L_use1")
    if stamps: A("  s_branch L_fin")
    else: A("  s_endpgm")
    A("L_far:")
    publish(" sc1")
    A("  s_branch L_pub")
    A("L_fin:")
    if prog:
        A("  s_mov_b64 exec, -1")
        A(f"  s_lshl_b32 s87, s{sWG}, 2\n  s_add_u32 s87, s87, s{sWAVE}\n  s_lshl_b32 s87, s87, 8\n  s_add_u32 s87, s87, 0x2000000")
        A(f"  v_lshrrev_b32 v1, 2, v{vTMP}\n  v_add_u32 v1, s87, v1\n  global_store_dword v1, v{vPROG}, {sr(sWS,2)}")
        A("; MID 30")
    if stamps:
        A("  s_mov_b64 exec, 1\n  s_waitcnt vmcnt(0)\n  s_memrealtime s[84:85]\n  s_memtime s[92:93]\n  s_getreg_b32 s86, hwreg(HW_REG_XCC_ID)\n  s_waitcnt lgkmcnt(0)")
        if adapt: A(f"  s_mov_b32 s92, s{sNB}\n  s_mov_b32 s90, 0\n; ADAPT")
        A("  s_sub_u32 s92, s92, s90\n  s_lshl_b32 s92, s92, 4\n  s_and_b32 s86, s86, 15\n  s_or_b32 s86, s86, s92")
        A(f"  s_lshl_b32 s87, s{sWG}, 2\n  s_add_u32 s87, s87, s{sWAVE}\n  s_lshl_b32 s87, s87, 4\n  s_add_u32 s87, s87, 0x1000000")
        A(f"  v_mov_b32 v4, s80\n  v_mov_b32 v5, s86\n  v_mov_b32 v6, s84\n  v_mov_b32 v7, s82\n  v_mov_b32 v1, s87")
        A(f"  global_store_dwordx4 v1, v[4:7], {sr(sWS,2)}")
        if tail:
            A(f"  v_mov_b32 v8, s76\n  v_mov_b32 v9, s78\n  v_mov_b32 v10, s84\n  v_mov_b32 v11, s{sQTR}\n  v_add_u32 v1, 0x800000, v1")
            A(f"  global_store_dwordx4 v1, v[8:11], {sr(sWS,2)}\n; TAILS")
    A("L_done:\n  s_endpgm")

    A("L_helper:")
    WQ = XK
    A(f"  s_mov_b32 s{sKSRD}, s{sQ}\n  s_mov_b32 s{sKSRD+1}, s{sQ+1}\n  s_movk_i32 s{sKSRD+2}, 0x4000\n  s_mov_b32 s{sKSRD+3}, 0x20000")
    A(f"  s_lshl_b32 s{sTMP}, s{sHEAD}, 8")
    A(f"  v_add_u32 v{T+3}, s{sTMP}, v{T+3}")
    for r in range(4):
        A(f"  buffer_load_dwordx4 {vr(WQ+r*4,4)}, v{T+3}, {sr(sKSRD,4)}, 0 offen offset:{r*16}")
    ws_srd()
    A("  s_barrier")
    consts()
    OMR, QR = ACC, ACC + 16
    A(f"  s_waitcnt vmcnt(0) lgkmcnt(0)")
    A(f"  s_add_u32 s{sTAG}, s{sTAG}, 0x9e3779b9\n  s_add_u32 s{sTAG}, s{sTAG}, s{sXCC}")
    A(f"  s_lshl_b32 s{sTMP}, s{sQTR}, 2\n  s_add_u32 s{sTMP}, s{sTMP}, {hex(POFF)}")
    A(f"  v_mov_b32 v{RING}, s{sTAG}\n  s_mov_b64 exec, 1")
    A(f"  buffer_store_dword v{RING}, off, {sr(sWSRD,4)}, s{sTMP}\n  s_mov_b64 exec, -1")
    if hb >= 1: A("  s_barrier")
    opperm(OMR, W); opperm(QR, WQ)
    for j in range(4):
        scale_unpack(QR+j*4); scale_rest(QR+j*4)
    A("  s_nop 1")
    for j in range(4):
        c0 = "0" if j == 0 else vr(D,4); c1 = "0" if j == 0 else vr(G0,4)
        A(f"  v_mfma_f32_16x16x32_bf16 {vr(D,4)}, {vr(OMR+j*4,4)}, {vr(QR+j*4,4)}, {c0}")
        A(f"  v_mfma_f32_16x16x32_bf16 {vr(G0,4)}, {vr(QR+j*4,4)}, {vr(QR+j*4,4)}, {c1}")
    A("  s_nop 7")
    pack4(D, T, T+1); unpack4(C, T, T+1)
    A(f"  v_cvt_pk_bf16_f32 v{T+2}, v{G0}, v{G0}")
    A(f"  v_and_b32 v{T+2}, s{sHI}, v{T+2}")
    for r in range(4): A(f"  v_fma_f32 v{C+r}, v{T+2}, -0.5, v{C+r}")
    phi_tail(); unpack4(PQ, T, T+1)
    pick(T, PQ)
    A(f"  v_lshrrev_b32 v{T+1}, 2, v{vTMP}")
    A(f"  ds_write_b128 v{vTMP}, {vr(PQ,4)} offset:{LDS_PQ}")
    A(f"  ds_write_b32 v{T+1}, v{T} offset:{LDS_PQZ}")
    A("  s_waitcnt lgkmcnt(0)\n  s_endpgm")
    A(f""".section .rodata,"a"
.p2align 6
.amdhsa_kernel {NAME}
  .amdhsa_next_free_vgpr {NVGPR}
  .amdhsa_next_free_sgpr {96 if stamps else 76}
  .amdhsa_accum_offset {NVGPR}
  .amdhsa_group_segment_fixed_size 0
  .amdhsa_kernarg_size 56
  .amdhsa_user_sgpr_count 2
  .amdhsa_user_sgpr_kernarg_segment_ptr 1
  .amdhsa_system_sgpr_workgroup_id_x 1
  .amdhsa_float_denorm_mode_32 3
.end_amdhsa_kernel""")
    return "\n".join(L) + "\n"

if __name__ == "__main__":
    if len(sys.argv) == 2:
        cfgs = eval(open(sys.argv[1]).read())
        for n, c in cfgs.items():
            open(f"{n}.s", "w").write(gen(**c))
        print(" ".join(f"{n}.s" for n in cfgs))
    else:
        kw = eval("dict(" + (sys.argv[2] if len(sys.argv) > 2 else "") + ")")
        open(sys.argv[1], "w").write(gen(**kw))
```

```python
import sys

NAME = "standalone__linear_kernel_rfa__decode_kernel"
HDR = """; Kernarg layout for this problem (56 bytes, ptrs only, base s[0:1]):
"""

vO, vA, vX, vTMP = 0, 1, 2, 3
D, G0, G1, C, PA = 4, 8, 12, 16, 20
XP, SEL, ONES = 24, 26, 28
T = 32
ACCZ, PQ, ACC = 40, 44, 48
OM0, OM1 = 80, 96
XV = 112
XK = 144
DT = 160
KS = 176
ID = 184
vC, vL = 186, 187
RING = 188
vZW, vZR, vP, vPROG = 220, 221, 222, 223
NVGPR = 224
sWG, sWAVE, sHEAD, sQTR, sTAG, sXCC = 2, 3, 4, 5, 6, 7
sKSRD, sVSRD, sWSRD, sXSRD = 8, 12, 16, 20
sSCALE, sLOG2E, sISM, sEPS = 24, 26, 28, 30
sHI, sPLO, sPHI, sT1 = 32, 33, 34, 35
sMD = 36
sMLO = 44
sCNT, sSLOT = 46, 47
sQ, sKP, sVP, sOM, sOUT, sDBG, sWS = 48, 50, 52, 54, 56, 58, 60
sMQ = 48
sTMP = 62
sDUE, sNB = 66, 67
sS1 = 68
sME, sINC, sFAR = 71, 72, 73
sTM = 74
LDS_Z, LDS_PQ, LDS_PQZ, LDS_PHI = 16384, 20480, 21504, 24576
EOFF, POFF = 0x1f00, 0x1e00

def vr(a, n): return f"v[{a}:{a+n-1}]"
def sr(a, n): return f"s[{a}:{a+n-1}]"

def gen(stamps=False, lds=24576 + 65536, flags="nt", order="xhead", at="loopend", Dp=5, abl=(), noepi=False, prog=0, tail=None,
        ep=6, DL=6, bar=(0,), hb=0, adapt=(6, 107, 150), tsn=4, paceV=None, t1off=65536, barV=None, bart=None, bar1=True):
    if barV is None: barV = bar
    if bart is None: bart = 0 in bar
    bars = {'K': bar, 'V': barV}
    L = []
    def A(s):
        for x in s.split("\n"): L.append(x)
    def stamp(name):
        if stamps and at == name: A("  s_memrealtime s[82:83]")
    def tstamp(name):
        if tail == name: A("  s_memrealtime s[78:79]")
    NWG = 256; NT = 16
    SIZE, T1OFF, STEP = 2097152, t1off, (131072 if t1off == 65536 else 65536)
    A(HDR + f"; @launch grid=({NWG},1,1) block=(320,1,1) lds={lds}")
    A('.amdgcn_target "amdgcn-amd-amdhsa--gfx950"\n.text')
    A(f".globl {NAME}\n.p2align 8\n.type {NAME},@function\n{NAME}:")
    A(f"  s_cmp_ge_u32 s{sWG}, {NWG}\n  s_cbranch_scc1 L_done")
    if stamps: A("  s_memrealtime s[80:81]\n  s_memtime s[90:91]")
    if adapt: A(f"  s_memrealtime {sr(sTM,2)}")
    A(f"  s_load_dwordx8 {sr(sQ,8)}, s[0:1], 0")
    A(f"  s_load_dwordx4 {sr(sOUT,4)}, s[0:1], 32")
    A(f"  s_load_dwordx2 {sr(sWS,2)}, s[0:1], 48")
    A(f"  v_lshrrev_b32 v{vTMP}, 6, v0")
    A(f"  v_and_b32 v0, 63, v0")
    A(f"  v_readfirstlane_b32 s{sWAVE}, v{vTMP}")
    if order == "xhead":
        A(f"  s_lshr_b32 s{sHEAD}, s{sWG}, 5\n  s_lshl_b32 s{sHEAD}, s{sHEAD}, 3\n  s_and_b32 s{sTMP}, s{sWG}, 7\n  s_add_u32 s{sHEAD}, s{sHEAD}, s{sTMP}")
        A(f"  s_bfe_u32 s{sQTR}, s{sWG}, 0x20003")
    else:
        A(f"  s_lshr_b32 s{sHEAD}, s{sWG}, 2\n  s_and_b32 s{sQTR}, s{sWG}, 3")
    A(f"  v_lshlrev_b32 v{vTMP}, 4, v0")
    A(f"  v_and_b32 v{T+3}, 48, v0\n  v_lshlrev_b32 v{T+3}, 2, v{T+3}")
    A(f"  v_and_b32 v{T}, 7, v0\n  v_lshl_add_u32 v{T}, v{T}, 8, v{T+3}")
    A(f"  s_lshl_b32 s{sTMP}, s{sQTR}, 2\n  s_add_u32 s{sTMP}, s{sTMP}, s{sWAVE}\n  s_lshl_b32 s{sTMP}, s{sTMP}, 12")
    A(f"  v_add_u32 v{vA}, s{sTMP}, v{vTMP}")
    A(f"  s_mov_b32 s{sT1}, {T1OFF}\n  s_mov_b32 s{sINC}, {STEP}")
    A(f"  s_lshl_b32 s{sTMP}, s{sHEAD}, 21\n  s_lshr_b32 s{sTMP+1}, s{sHEAD}, 11")
    A(f"  s_mov_b32 s{sKSRD+2}, {SIZE}\n  s_mov_b32 s{sKSRD+3}, 0x20000")
    A(f"  s_movk_i32 s{sXSRD+2}, 0x800\n  s_mov_b32 s{sXSRD+3}, 0x20000")
    A("  s_waitcnt lgkmcnt(0)")
    A(f"  s_mov_b32 s{sXSRD}, s{sOM}\n  s_mov_b32 s{sXSRD+1}, s{sOM+1}")
    W = XV
    for r in range(4):
        A(f"  buffer_load_dwordx4 {vr(W+r*4,4)}, v{T}, {sr(sXSRD,4)}, 0 offen offset:{r*16}")
    A(f"  s_cmp_eq_u32 s{sWAVE}, 4\n  s_cbranch_scc1 L_helper")
    A(f"  s_add_u32 s{sKSRD}, s{sKP}, s{sTMP}\n  s_addc_u32 s{sKSRD+1}, s{sKP+1}, s{sTMP+1}")
    A(f"  s_add_u32 s{sVSRD}, s{sVP}, s{sTMP}\n  s_addc_u32 s{sVSRD+1}, s{sVP+1}, s{sTMP+1}")
    stamp("kernarg")

    def issue(i, ph="K"):
        i %= 8
        so = f"s{sT1}" if i >> 2 else "0"
        A(f"  buffer_load_dwordx4 {vr(RING+i*4,4)}, v{vA}, {sr(sKSRD,4)}, {so} offen offset:{(i&3)*1024} {flags}")
        if i == 7:
            A(f"  v_add_u32 v{vA}, s{sINC}, v{vA}")
            if ph == "K": A(f"  s_cselect_b64 {sr(sKSRD,2)}, {sr(sVSRD,2)}, {sr(sKSRD,2)}")
    def consts():
        for p, val in ((sSCALE, 0x3e9837f0), (sLOG2E, 0x3fb8aa3c), (sISM, 0x3eb504f3), (sEPS, 0x358637bd)):
            A(f"  s_mov_b32 s{p}, {hex(val)}\n  s_mov_b32 s{p+1}, {hex(val)}")
        A(f"  s_mov_b32 s{sHI}, 0xffff0000\n  s_mov_b32 s{sPLO}, 0x05040100\n  s_mov_b32 s{sPHI}, 0x07060302")
        for k, val in enumerate((0x22222222, 0x44444444, 0x88888888)):
            A(f"  s_mov_b32 s{sMQ+2*k}, {hex(val)}\n  s_mov_b32 s{sMQ+2*k+1}, {hex(val)}")
    def ws_srd():
        A(f"  s_lshl_b32 s{sTMP}, s{sHEAD}, 15")
        A(f"  s_add_u32 s{sWSRD}, s{sWS}, s{sTMP}\n  s_addc_u32 s{sWSRD+1}, s{sWS+1}, 0")
        A(f"  s_load_dword s{sTAG}, {sr(sWSRD,2)}, {hex(EOFF)}")
        A(f"  s_mov_b32 s{sWSRD+2}, 0x8000\n  s_mov_b32 s{sWSRD+3}, 0x20000")
        A(f"  s_getreg_b32 s{sXCC}, hwreg(HW_REG_XCC_ID, 0, 4)")
    def pair_perms(n, ph):
        t, pp = n >> 2, (n & 3) >> 1
        a, b = RING + (n - 1) * 4, RING + n * 4
        for q in range(4):
            for h in range(2):
                e = 2 * q + h
                dst = XV + 4 * e + 2 * t + pp if ph == "V" else XK + 2 * e + pp
                A(f"  v_perm_b32 v{dst}, v{b+q}, v{a+q}, s{sPHI if h else sPLO}")
    def opperm(dst, src):
        for q in range(4):
            for h in range(2):
                for rr in range(2):
                    A(f"  v_perm_b32 v{dst+q*4+h*2+rr}, v{src+(2*rr+1)*4+q}, v{src+(2*rr)*4+q}, s{sPHI if h else sPLO}")
    def pick(dst, src):
        A(f"  v_cndmask_b32 v{dst}, v{src}, v{src+1}, {sr(sMQ,2)}")
        A(f"  v_cndmask_b32 v{dst}, v{dst}, v{src+2}, {sr(sMQ+2,2)}")
        A(f"  v_cndmask_b32 v{dst}, v{dst}, v{src+3}, {sr(sMQ+4,2)}")
    def scale_unpack(a):
        for i in range(4):
            A(f"  v_lshlrev_b32 v{T+2*i}, 16, v{a+i}\n  v_and_b32 v{T+2*i+1}, s{sHI}, v{a+i}")
    def scale_rest(a):
        for i in range(4): A(f"  v_pk_mul_f32 {vr(T+2*i,2)}, {vr(T+2*i,2)}, {sr(sSCALE,2)}")
        for i in range(4): A(f"  v_cvt_pk_bf16_f32 v{a+i}, v{T+2*i}, v{T+2*i+1}")
    def unpack4(dst, p0, p1):
        A(f"  v_lshlrev_b32 v{dst}, 16, v{p0}\n  v_and_b32 v{dst+1}, s{sHI}, v{p0}")
        A(f"  v_lshlrev_b32 v{dst+2}, 16, v{p1}\n  v_and_b32 v{dst+3}, s{sHI}, v{p1}")
    def pack4(src, p0, p1):
        A(f"  v_cvt_pk_bf16_f32 v{p0}, v{src}, v{src+1}\n  v_cvt_pk_bf16_f32 v{p1}, v{src+2}, v{src+3}")
    def phi_tail():
        pack4(C, T, T+1); unpack4(C, T, T+1)
        A(f"  v_pk_mul_f32 {vr(C,2)}, {vr(C,2)}, {sr(sLOG2E,2)}\n  v_pk_mul_f32 {vr(C+2,2)}, {vr(C+2,2)}, {sr(sLOG2E,2)}")
        for r in range(4): A(f"  v_exp_f32 v{C+r}, v{C+r}")
        A("  s_nop 0")
        pack4(C, T, T+1); unpack4(C, T, T+1)
        A(f"  v_pk_mul_f32 {vr(C,2)}, {vr(C,2)}, {sr(sISM,2)}\n  v_pk_mul_f32 {vr(C+2,2)}, {vr(C+2,2)}, {sr(sISM,2)}")
        pack4(C, T, T+1); unpack4(C, T, T+1)
        A(f"  v_pk_add_f32 {vr(C,2)}, {vr(C,2)}, {sr(sEPS,2)}\n  v_pk_add_f32 {vr(C+2,2)}, {vr(C+2,2)}, {sr(sEPS,2)}")
        pack4(C, T, T+1)
    def poll_loads(P):
        for w in range(3):
            A(f"  buffer_load_dwordx4 {vr(P+w*8,4)}, v{vX}, {sr(sWSRD,4)}, s{sS1+w} offen sc1")
            A(f"  buffer_load_dwordx2 {vr(P+w*8+4,2)}, v{vC}, {sr(sWSRD,4)}, s{sS1+w} offen sc1")
    def steps(t, j0):
        g = G1 if t else G0
        om = OM1 if t else OM0
        for k in range(4):
            A(f"  v_mfma_f32_16x16x16_bf16 {vr(DT+4*k,4)}, {vr(XK+2*(2*j0+k),2)}, {vr(ID,2)}, 0")
        A("  s_nop 5")
        def mul(k):
            for r in (0, 2): A(f"  v_pk_mul_f32 {vr(DT+4*k+r,2)}, {vr(DT+4*k+r,2)}, {sr(sSCALE,2)}")
        def cvt(s):
            for k in range(2):
                for r in range(2):
                    A(f"  v_cvt_pk_bf16_f32 v{KS+4*s+2*k+r}, v{DT+4*(2*s+k)+2*r}, v{DT+4*(2*s+k)+2*r+1}")
        def mf(s):
            j = j0 + s
            A(f"  v_mfma_f32_16x16x32_bf16 {vr(D,4)}, {vr(KS+4*s,4)}, {vr(om+4*j,4)}, {'0' if (t, j) == (0, 0) else vr(D,4)}")
            A(f"  v_mfma_f32_16x16x32_bf16 {vr(g,4)}, {vr(KS+4*s,4)}, {vr(KS+4*s,4)}, {'0' if j == 0 else vr(g,4)}")
        mul(0); mul(1); cvt(0); mul(2); mul(3); mf(0); cvt(1)
        A("  s_nop 1")
        mf(1)

    for i in range(Dp): issue(i)
    stamp("issued")
    ws_srd()
    A(f"  s_lshl_b32 s{sSLOT}, s{sQTR}, 13")
    consts()
    A(f"  s_mov_b32 s{sMLO}, 0x00ff00ff\n  s_mov_b32 s{sMLO+1}, 0x00ff00ff")
    for r in range(4):
        m = sum(1 << (20 * g + r) for g in range(4))
        A(f"  s_mov_b32 s{sMD+2*r}, {hex(m & 0xffffffff)}\n  s_mov_b32 s{sMD+2*r+1}, {hex(m >> 32)}")
    A(f"  v_mov_b32 v{XP+1}, 0\n  v_mov_b32 v{SEL+1}, 0")
    A(f"  v_mov_b32 v{T}, 0xbf00\n  v_mov_b32 v{T+1}, 0xbf000000")
    A(f"  v_cndmask_b32 v{SEL}, v{T+1}, v{T}, {sr(sMLO,2)}")
    A(f"  v_mov_b32 v{T}, 0x3f80\n  v_mov_b32 v{T+1}, 0x3f800000")
    for k in range(2):
        A(f"  v_cndmask_b32 v{ID+k}, 0, v{T}, {sr(sMD+4*k,2)}")
        A(f"  v_cndmask_b32 v{ID+k}, v{ID+k}, v{T+1}, {sr(sMD+4*k+2,2)}")
    for r in range(4): A(f"  v_mov_b32 v{ONES+r}, 0x3f803f80")
    for r in range(4): A(f"  v_mov_b32 v{ACCZ+r}, 0")
    for r in range(32): A(f"  v_mov_b32 v{ACC+r}, 0")
    for w in range(1, 4): A(f"  s_xor_b32 s{sS1+w-1}, s{sSLOT}, {hex(w*8192)}")
    A(f"  s_movk_i32 s{sME}, {hex(POFF)}\n  s_mov_b32 s{sFAR}, 0")
    A(f"  s_lshl_b32 s{sTMP}, s{sWAVE}, 10")
    A(f"  v_add_u32 v{vX}, s{sTMP}, v{vTMP}")
    A(f"  v_lshrrev_b32 v{vZW}, 2, v{vX}")
    A(f"  v_lshrrev_b32 v{vC}, 1, v{vX}\n  v_add_u32 v{vC}, 0x1000, v{vC}")
    A(f"  v_lshrrev_b32 v{vZR}, 2, v{vTMP}\n  v_add_u32 v{vZR}, {LDS_Z}, v{vZR}")
    A(f"  s_lshl_b32 s{sTMP}, s{sWAVE}, 12")
    A(f"  v_add_u32 v{vL}, s{sTMP}, v{vTMP}")
    A(f"  s_mov_b32 s{sXSRD}, s{sOUT}\n  s_mov_b32 s{sXSRD+1}, s{sOUT+1}\n  s_movk_i32 s{sXSRD+2}, 0x4000\n  s_mov_b32 s{sXSRD+3}, 0x20000")
    A(f"  v_and_b32 v{T+4}, 0xf0, v{vTMP}")
    A(f"  v_lshrrev_b32 v{T+6}, 9, v{vTMP}")
    A(f"  v_lshl_add_u32 v{T+4}, v{T+6}, 3, v{T+4}")
    A(f"  s_lshl_b32 s{sTMP}, s{sHEAD}, 8\n  s_lshl_b32 s{sTMP+1}, s{sWAVE}, 1\n  s_add_u32 s{sTMP}, s{sTMP}, s{sTMP+1}")
    A(f"  v_add_u32 v{vO}, s{sTMP}, v{T+4}")
    A(f"  s_lshl_b32 s{sTMP}, s{sWAVE}, 14\n  s_add_u32 s{sTMP}, s{sTMP}, {LDS_PHI}")
    A(f"  v_add_u32 v{vP}, s{sTMP}, v{vTMP}")
    if adapt: A(f"  s_add_u32 s{sDUE}, s{sTM}, {adapt[2]}\n  s_mov_b64 vcc, 0\n  s_mov_b32 s{sNB}, 0")
    A(f"  s_mov_b32 s{sCNT}, {NT - 1}\n  s_cmp_eq_u32 s{sCNT}, 0")
    for n in range(3):
        A(f"  s_waitcnt vmcnt({Dp-1})")
        if n == 0: stamp("firstdata")
        issue(n + Dp)
        if n == 0: opperm(OM1, W)
        if n == 1:
            pair_perms(1, "K")
            for r in range(16): A(f"  v_cndmask_b32 v{OM0+r}, 0, v{OM1+r}, {sr(sMLO,2)}")
        if n == 2:
            for r in range(16): A(f"  v_cndmask_b32 v{OM1+r}, v{OM1+r}, 0, {sr(sMLO,2)}")
            if bar1: A("  s_barrier")
    stamp("loopstart")
    A("  s_branch L_joinK")
    P1, P2 = DT, XV
    def phi1():
        for r in range(4): A(f"  v_cvt_pk_bf16_f32 v{G0+r}, v{G0+r}, v{G1+r}")
        pack4(D, T, T+1)
        A(f"  v_cndmask_b32 v{XP}, 0, v{G0}, {sr(sMD,2)}")
        for r in range(1, 4): A(f"  v_cndmask_b32 v{XP}, v{XP}, v{G0+r}, {sr(sMD+2*r,2)}")
        unpack4(C, T, T+1)
        A("  s_nop 1")
        A(f"  v_mfma_f32_16x16x16_bf16 {vr(C,4)}, {vr(XP,2)}, {vr(SEL,2)}, {vr(C,4)}")
    def phi2():
        A("  s_nop 5")
        phi_tail()
        A(f"  v_cndmask_b32 v{PA}, 0, v{T}, {sr(sMLO,2)}\n  v_cndmask_b32 v{PA+1}, 0, v{T+1}, {sr(sMLO,2)}")
        A(f"  v_cndmask_b32 v{PA+2}, v{T}, 0, {sr(sMLO,2)}\n  v_cndmask_b32 v{PA+3}, v{T+1}, 0, {sr(sMLO,2)}")
        A(f"  ds_write_b128 v{vP}, {vr(PA,4)}")
        A(f"  v_add_u32 v{vP}, 0x400, v{vP}")
        A(f"  v_mfma_f32_16x16x32_bf16 {vr(ACCZ,4)}, {vr(PA,4)}, {vr(ONES,4)}, {vr(ACCZ,4)}")
    def getphi():
        A(f"  ds_read_b128 {vr(PA,4)}, v{vP}")
        A(f"  v_add_u32 v{vP}, 0x400, v{vP}")
    def pvall():
        A("  s_waitcnt lgkmcnt(0)")
        for e in (0, 4, 1, 5, 2, 6, 3, 7):
            A(f"  v_mfma_f32_16x16x32_bf16 {vr(ACC+e*4,4)}, {vr(PA,4)}, {vr(XV+e*4,4)}, {vr(ACC+e*4,4)}")
    def top(ph):
        A(f"  s_sub_u32 s{sCNT}, s{sCNT}, 1")
        if adapt:
            pace = adapt[1] if ph == "K" or paceV is None else paceV
            A(f"  s_waitcnt lgkmcnt(0)\n  s_sub_u32 s{sTMP}, s{sTM}, s{sDUE}\n  s_add_u32 s{sDUE}, s{sDUE}, {pace}")
            A(f"  s_cmp_gt_i32 s{sTMP}, 0\n  s_cselect_b64 vcc, -1, 0")
            if stamps: A(f"  s_addc_u32 s{sNB}, s{sNB}, 0")
            if prog == 2: A(f"  s_add_u32 m0, s{sCNT}, {16 if ph == 'K' else 0}\n  v_writelane_b32 v{vPROG}, s{sTM}, m0")
        A(f"  s_cmp_eq_u32 s{sCNT}, 0")
        if ph == "K": A(f"  s_cselect_b32 s{sINC}, {hex(-15 * STEP & 0xffffffff)}, s{sINC}")
    def loop(ph, chunks):
        ool = []
        ool_at = len(L)
        A(f"  .p2align 3\nL_loop{ph}:")
        loop_start = len(L)
        top(ph)
        lastpos = Dp - 1; extra = 0
        for n in range(8):
            if n == 3: A(f"L_join{ph}:")
            if ph == "V": A(f"  s_cbranch_scc1 L_last{n}")
            if adapt: A(f"  s_cbranch_vccnz L_deep{ph}{n}")
            A(f"  s_waitcnt vmcnt({Dp - 1})")
            if n in bars[ph]: A("  s_barrier")
            issue(n + Dp, ph)
            A(f"L_back{ph}{n}:")
            save = len(L)
            if adapt:
                DB = adapt[0]
                ddB = [min(DB, Dp + 7 - k) for k in range(8)]
                prevB = lambda k: Dp - 1 if k == 0 else k - 1 + ddB[k - 1]
                A(f"L_deep{ph}{n}:")
                A(f"  s_waitcnt vmcnt({prevB(n) - n})")
                if n in bars[ph]: A("  s_barrier")
                for i in range(prevB(n) + 1, n + ddB[n] + 1): issue(i, ph)
                A(f"  s_branch L_back{ph}{n}")
            if ph == "V":
                A(f"L_last{n}:")
                A(f"  s_waitcnt vmcnt({lastpos - n + extra})")
                if n in bars[ph]: A("  s_barrier")
                done = lastpos == 7
                while lastpos < min(7, n + DL):
                    lastpos += 1; issue(lastpos, ph)
                if lastpos == 7 and not done:
                    A(f"  buffer_load_dwordx4 {vr(T+4,4)}, off, {sr(sWSRD,4)}, s{sME} sc1"); extra += 1
                if n == ep:
                    assert lastpos == 7
                    poll_loads(P1); extra += 6
                A(f"  s_branch L_back{ph}{n}")
            ool.extend(L[save:]); del L[save:]
            if adapt and n == tsn: A(f"  s_memrealtime {sr(sTM,2)}")
            if n & 1: pair_perms(n, ph)
            if n in chunks: chunks[n]()
        A(f"  s_cbranch_scc0 L_loop{ph}")
        if abl:
            body = L[loop_start:]; del L[loop_start:]
            for x in body:
                t = x.strip()
                if "valu" in abl and t.startswith("v_") and not t.startswith(("v_mfma", "v_add_u32", "v_writelane", "v_readfirst")): continue
                if "mfma" in abl and t.startswith("v_mfma"): continue
                L.append(x)
        L[ool_at:ool_at] = ool
    loop("K", {0: lambda: steps(1, 2), 1: phi1, 2: phi2, 3: lambda: (A("  s_nop 1"), steps(0, 0)), 4: lambda: steps(0, 2),
               7: lambda: (A("  s_nop 1"), steps(1, 0))})
    stamp("mid")
    A(f"  s_mov_b32 s{sINC}, {STEP}")
    if adapt: A(f"  s_add_u32 s{sDUE}, s{sDUE}, {adapt[1]}\n  s_mov_b64 vcc, 0")
    for n in range(3):
        A(f"  s_waitcnt vmcnt({Dp-1})")
        if n == 0 and bart: A("  s_barrier")
        issue(n + Dp, "V")
        if n == 0: steps(1, 2)
        if n == 1: pair_perms(1, "V"); phi1()
        if n == 2: A("  s_nop 0"); phi2()
    A(f"  v_add_u32 v{vP}, {hex(-16 * 1024 & 0xffffffff)}, v{vP}")
    A(f"  s_mov_b32 s{sCNT}, {NT - 1}\n  s_cmp_eq_u32 s{sCNT}, 0")
    A("  s_branch L_joinV")
    loop("V", {4: getphi, 7: pvall})

    stamp("loopend")
    if tail: A("  s_memrealtime s[76:77]\n  s_memrealtime s[78:79]")
    if noepi: A("  s_waitcnt vmcnt(0)\n  s_branch L_fin")
    R = OM0
    CK, RZ = OM1, OM1 + 1
    PZ = OM1 + 6
    pick(T, ACCZ)
    A(f"  v_mov_b32 v{T+1}, v{T}")
    A("  s_nop 1")
    A(f"  v_permlane32_swap_b32 v{T}, v{T+1}")
    A(f"  v_add_f32 v{T}, v{T}, v{T+1}")
    A(f"  ds_write_b32 v{vZW}, v{T} offset:{LDS_Z}")
    for p in range(4):
        for r in range(4): A(f"  v_permlane32_swap_b32 v{ACC+p*4+r}, v{ACC+(p+4)*4+r}")
        for r in range(0, 4, 2): A(f"  v_pk_add_f32 {vr(ACC+p*4+r,2)}, {vr(ACC+p*4+r,2)}, {vr(ACC+(p+4)*4+r,2)}")
        A(f"  ds_write_b128 v{vL}, {vr(ACC+p*4,4)} offset:{p*1024}")
    A("  s_waitcnt lgkmcnt(0)")
    A(f"  s_add_u32 s{sTAG}, s{sTAG}, 0x9e3779b9")
    A(f"  s_add_u32 s{sME}, s{sTAG}, s{sXCC}")
    tstamp("prebar")
    A("  s_barrier")
    tstamp("postbar")
    for w in range(4): A(f"  ds_read_b128 {vr(R+w*4,4)}, v{vX} offset:{w*4096}")
    A(f"  ds_read2_b32 {vr(T,2)}, v{vZR} offset0:0 offset1:64")
    A(f"  ds_read2_b32 {vr(T+2,2)}, v{vZR} offset0:128 offset1:192")
    A(f"  ds_read_b128 {vr(PQ,4)}, v{vTMP} offset:{LDS_PQ}")
    A(f"  ds_read_b32 v{PZ}, v{vZR} offset:{LDS_PQZ - LDS_Z}")
    A("  s_waitcnt vmcnt(6)")
    A(f"  v_bitop3_b32 v{T+4}, v{T+4}, v{T+5}, s{sME} bitop3:0x7e")
    A(f"  v_bitop3_b32 v{T+6}, v{T+6}, v{T+7}, s{sME} bitop3:0x7e")
    A(f"  v_or_b32 v{T+4}, v{T+4}, v{T+6}")
    A(f"  v_cmp_ne_u32 vcc, 0, v{T+4}")
    A("  s_waitcnt lgkmcnt(2)")
    for r in (0, 2): A(f"  v_pk_add_f32 {vr(R+r,2)}, {vr(R+r,2)}, {vr(R+4+r,2)}")
    for r in (0, 2): A(f"  v_pk_add_f32 {vr(R+8+r,2)}, {vr(R+8+r,2)}, {vr(R+12+r,2)}")
    A(f"  v_pk_add_f32 {vr(T,2)}, {vr(T,2)}, {vr(T+2,2)}")
    for r in (0, 2): A(f"  v_pk_add_f32 {vr(R+r,2)}, {vr(R+r,2)}, {vr(R+8+r,2)}")
    A(f"  v_add_f32 v{RZ}, v{T}, v{T+1}")
    def publish(fl):
        A(f"  buffer_store_dwordx4 {vr(R,4)}, v{vX}, {sr(sWSRD,4)}, s{sSLOT} offen{fl}")
        A(f"  v_bitop3_b32 v{CK}, v{R}, v{R+1}, s{sTAG} bitop3:0x96")
        A(f"  v_bitop3_b32 v{T}, v{R+2}, v{R+3}, v{RZ} bitop3:0x96")
        A(f"  v_xor_b32 v{CK}, v{CK}, v{T}")
        A(f"  buffer_store_dwordx2 {vr(CK,2)}, v{vC}, {sr(sWSRD,4)}, s{sSLOT} offen{fl}")
    A("  s_cbranch_vccnz L_far")
    publish("")
    A("L_pub:")
    tstamp("pub")
    def check(P):
        for w in range(3): A(f"  v_bitop3_b32 v{T+w}, v{P+8*w}, v{P+8*w+1}, s{sTAG} bitop3:0x96")
        for w in range(3): A(f"  v_bitop3_b32 v{T+w}, v{P+8*w+2}, v{P+8*w+3}, v{T+w} bitop3:0x96")
        for w in range(3): A(f"  v_bitop3_b32 v{T+w}, v{P+8*w+4}, v{P+8*w+5}, v{T+w} bitop3:0x96")
        A(f"  v_or3_b32 v{T}, v{T}, v{T+1}, v{T+2}")
        A(f"  v_cmp_ne_u32 vcc, 0, v{T}")
        A("  s_nop 1")
    def combine(P):
        for r in (0, 2): A(f"  v_pk_add_f32 {vr(R+r,2)}, {vr(R+r,2)}, {vr(P+r,2)}")
        for r in (0, 2): A(f"  v_pk_add_f32 {vr(P+8+r,2)}, {vr(P+8+r,2)}, {vr(P+16+r,2)}")
        A(f"  v_add_f32 v{RZ}, v{RZ}, v{P+5}\n  v_add_f32 v{P+13}, v{P+13}, v{P+21}")
        for r in (0, 2): A(f"  v_pk_add_f32 {vr(R+r,2)}, {vr(R+r,2)}, {vr(P+8+r,2)}")
        A(f"  v_add_f32 v{RZ}, v{RZ}, v{P+13}")
    poll_loads(P2)
    A("  s_waitcnt vmcnt(8)")
    check(P1)
    A("  s_cbranch_vccnz L_try2")
    A("L_use1:")
    tstamp("got")
    combine(P1)
    A("L_final:")
    A("  s_waitcnt lgkmcnt(0)")
    pack4(R, T, T+1)
    A(f"  v_cvt_pk_bf16_f32 v{T+2}, v{RZ}, v{RZ}")
    unpack4(R, T, T+1)
    A(f"  v_and_b32 v{RZ}, s{sHI}, v{T+2}")
    A(f"  v_mul_f32 v{RZ}, v{RZ}, v{PZ}")
    A(f"  v_mul_f32 v{R}, v{R}, v{PQ}\n  v_fmac_f32 v{R}, v{R+1}, v{PQ+1}")
    A(f"  v_add_f32_dpp v{RZ}, v{RZ}, v{RZ} quad_perm:[1,0,3,2] row_mask:0xf bank_mask:0xf")
    A(f"  v_fmac_f32 v{R}, v{R+2}, v{PQ+2}\n  v_fmac_f32 v{R}, v{R+3}, v{PQ+3}")
    A(f"  v_add_f32_dpp v{RZ}, v{RZ}, v{RZ} quad_perm:[2,3,0,1] row_mask:0xf bank_mask:0xf")
    A(f"  v_mov_b32 v{R+1}, v{R}\n  v_mov_b32 v{RZ+1}, v{RZ}\n  s_nop 1")
    A(f"  v_permlane16_swap_b32 v{R}, v{R+1}\n  v_permlane16_swap_b32 v{RZ}, v{RZ+1}")
    A(f"  v_add_f32 v{R}, v{R}, v{R+1}\n  v_add_f32 v{RZ}, v{RZ}, v{RZ+1}")
    A(f"  v_cvt_pk_bf16_f32 v{T}, v{R}, v{RZ}")
    A(f"  v_lshlrev_b32 v{R}, 16, v{T}\n  v_and_b32 v{R+1}, s{sHI}, v{T}")
    A(f"  v_add_f32 v{R+1}, s{sEPS}, v{R+1}")
    A(f"  v_mul_f32 v{R}, 0x3e800000, v{R}")
    A(f"  v_cvt_pk_bf16_f32 v{T}, v{R+1}, v{R+1}")
    A(f"  v_and_b32 v{R+1}, s{sHI}, v{T}")
    A(f"""  v_mul_f32 v{R+1}, 0x3e800000, v{R+1}
  v_rcp_f32 v{R+1}, v{R+1}
  v_mov_b32 v{T+1}, s{sTAG}
  v_mul_f32 v{R}, v{R}, v{R+1}
  v_cvt_pk_bf16_f32 v{R}, v{R}, v{R}""")
    A("  s_mov_b32 exec_lo, 0xffff\n  s_mov_b32 exec_hi, 0xffff")
    A(f"  buffer_store_short v{R}, v{vO}, {sr(sXSRD,4)}, 0 offen")
    A(f"  s_mov_b64 exec, 1\n  s_movk_i32 s{sTMP+2}, {hex(EOFF)}")
    A(f"  buffer_store_dword v{T+1}, off, {sr(sWSRD,4)}, s{sTMP+2}")
    tstamp("outissue")
    if stamps: A("  s_branch L_fin")
    else: A("  s_endpgm")
    A("L_try2:\n  s_waitcnt vmcnt(0)")
    poll_loads(P1)
    check(P2)
    A("  s_cbranch_vccnz L_try3")
    tstamp("got")
    combine(P2)
    A("  s_branch L_final")
    A("L_try3:\n  s_waitcnt vmcnt(0)")
    check(P1)
    A("  s_cbranch_vccz L_use1")
    A(f"  s_sub_u32 s{sFAR}, s{sFAR}, 1\n  s_cbranch_scc1 {'L_fin' if stamps else 'L_done'}")
    poll_loads(P1)
    A("  s_branch L_try3")
    A("L_far:")
    publish(" sc1")
    A(f"  s_cmp_eq_u32 s{sQTR}, 0\n  s_cselect_b32 s{sFAR}, 0x40000, 0")
    A("  s_branch L_pub")
    A("L_fin:")
    if prog:
        A("  s_mov_b64 exec, -1")
        A(f"  s_lshl_b32 s87, s{sWG}, 2\n  s_add_u32 s87, s87, s{sWAVE}\n  s_lshl_b32 s87, s87, 8\n  s_add_u32 s87, s87, 0x2000000")
        A(f"  v_lshrrev_b32 v1, 2, v{vTMP}\n  v_add_u32 v1, s87, v1\n  global_store_dword v1, v{vPROG}, {sr(sWS,2)}")
        A("; MID 30")
    if stamps:
        A("  s_mov_b64 exec, 1\n  s_waitcnt vmcnt(0)\n  s_memrealtime s[84:85]\n  s_memtime s[92:93]\n  s_getreg_b32 s86, hwreg(HW_REG_XCC_ID)\n  s_waitcnt lgkmcnt(0)")
        if adapt: A(f"  s_mov_b32 s92, s{sNB}\n  s_mov_b32 s90, 0\n; ADAPT")
        A("  s_sub_u32 s92, s92, s90\n  s_lshl_b32 s92, s92, 4\n  s_and_b32 s86, s86, 15\n  s_or_b32 s86, s86, s92")
        A(f"  s_lshl_b32 s87, s{sWG}, 2\n  s_add_u32 s87, s87, s{sWAVE}\n  s_lshl_b32 s87, s87, 4\n  s_add_u32 s87, s87, 0x1000000")
        A(f"  v_mov_b32 v4, s80\n  v_mov_b32 v5, s86\n  v_mov_b32 v6, s84\n  v_mov_b32 v7, s82\n  v_mov_b32 v1, s87")
        A(f"  global_store_dwordx4 v1, v[4:7], {sr(sWS,2)}")
        if tail:
            A(f"  v_mov_b32 v8, s76\n  v_mov_b32 v9, s78\n  v_mov_b32 v10, s84\n  v_mov_b32 v11, s{sQTR}\n  v_add_u32 v1, 0x800000, v1")
            A(f"  global_store_dwordx4 v1, v[8:11], {sr(sWS,2)}\n; TAILS")
    A("L_done:\n  s_endpgm")

    A("L_helper:")
    WQ = XK
    A(f"  s_mov_b32 s{sKSRD}, s{sQ}\n  s_mov_b32 s{sKSRD+1}, s{sQ+1}\n  s_movk_i32 s{sKSRD+2}, 0x4000\n  s_mov_b32 s{sKSRD+3}, 0x20000")
    A(f"  s_lshl_b32 s{sTMP}, s{sHEAD}, 8")
    A(f"  v_add_u32 v{T+3}, s{sTMP}, v{T+3}")
    for r in range(4):
        A(f"  buffer_load_dwordx4 {vr(WQ+r*4,4)}, v{T+3}, {sr(sKSRD,4)}, 0 offen offset:{r*16}")
    ws_srd()
    if bar1: A("  s_barrier")
    consts()
    OMR, QR = ACC, ACC + 16
    A(f"  s_waitcnt vmcnt(0) lgkmcnt(0)")
    A(f"  s_add_u32 s{sTAG}, s{sTAG}, 0x9e3779b9\n  s_add_u32 s{sTAG}, s{sTAG}, s{sXCC}")
    A(f"  s_lshl_b32 s{sTMP}, s{sQTR}, 2\n  s_add_u32 s{sTMP}, s{sTMP}, {hex(POFF)}")
    A(f"  v_mov_b32 v{RING}, s{sTAG}\n  s_mov_b64 exec, 1")
    A(f"  buffer_store_dword v{RING}, off, {sr(sWSRD,4)}, s{sTMP}\n  s_mov_b64 exec, -1")
    if hb >= 1: A("  s_barrier")
    opperm(OMR, W); opperm(QR, WQ)
    for j in range(4):
        scale_unpack(QR+j*4); scale_rest(QR+j*4)
    A("  s_nop 1")
    for j in range(4):
        c0 = "0" if j == 0 else vr(D,4); c1 = "0" if j == 0 else vr(G0,4)
        A(f"  v_mfma_f32_16x16x32_bf16 {vr(D,4)}, {vr(OMR+j*4,4)}, {vr(QR+j*4,4)}, {c0}")
        A(f"  v_mfma_f32_16x16x32_bf16 {vr(G0,4)}, {vr(QR+j*4,4)}, {vr(QR+j*4,4)}, {c1}")
    A("  s_nop 7")
    pack4(D, T, T+1); unpack4(C, T, T+1)
    A(f"  v_cvt_pk_bf16_f32 v{T+2}, v{G0}, v{G0}")
    A(f"  v_and_b32 v{T+2}, s{sHI}, v{T+2}")
    for r in range(4): A(f"  v_fma_f32 v{C+r}, v{T+2}, -0.5, v{C+r}")
    phi_tail(); unpack4(PQ, T, T+1)
    pick(T, PQ)
    A(f"  v_lshrrev_b32 v{T+1}, 2, v{vTMP}")
    A(f"  ds_write_b128 v{vTMP}, {vr(PQ,4)} offset:{LDS_PQ}")
    A(f"  ds_write_b32 v{T+1}, v{T} offset:{LDS_PQZ}")
    A("  s_waitcnt lgkmcnt(0)\n  s_endpgm")
    A(f""".section .rodata,"a"
.p2align 6
.amdhsa_kernel {NAME}
  .amdhsa_next_free_vgpr {NVGPR}
  .amdhsa_next_free_sgpr {96 if stamps else 76}
  .amdhsa_accum_offset {NVGPR}
  .amdhsa_group_segment_fixed_size 0
  .amdhsa_kernarg_size 56
  .amdhsa_user_sgpr_count 2
  .amdhsa_user_sgpr_kernarg_segment_ptr 1
  .amdhsa_system_sgpr_workgroup_id_x 1
  .amdhsa_float_denorm_mode_32 3
.end_amdhsa_kernel""")
    return "\n".join(L) + "\n"

if __name__ == "__main__":
    if len(sys.argv) == 2:
        cfgs = eval(open(sys.argv[1]).read())
        for n, c in cfgs.items():
            open(f"{n}.s", "w").write(gen(**c))
        print(" ".join(f"{n}.s" for n in cfgs))
    else:
        kw = eval("dict(" + (sys.argv[2] if len(sys.argv) > 2 else "") + ")")
        open(sys.argv[1], "w").write(gen(**kw))
```
